```python
import torch

def _softmax(x, axis=-1):
    return torch.softmax(x, dim=axis)
def _gelu(x):
    return torch.nn.functional.gelu(x, approximate="tanh")
def _silu(x):
    return torch.nn.functional.silu(x)
def _sigmoid(x):
    return torch.sigmoid(x)
def _layernorm(x, axis=-1, eps=1e-5):
    m = x.mean(dim=axis, keepdim=True)
    v = x.var(dim=axis, keepdim=True, unbiased=False)
    return (x - m) / torch.sqrt(v + eps)
def _scatter_add(tgt, idx, src, axis=0):
    return tgt.clone().index_add_(axis, idx, src)
def _segment_sum(src, seg, n):
    out = torch.zeros((n,) + src.shape[1:], dtype=src.dtype)
    return out.index_add_(0, seg, src)
def _pad(x, pw):
    flat = tuple(v for pair in reversed(pw) for v in pair)
    return torch.nn.functional.pad(x, flat)

kernel_name = 'gated_mix__spectral_gfnet__dense_activation_silu__prompt'

def setup_inputs():

    _w = (lambda a: (lambda t: t.to(torch.bfloat16) if t.is_floating_point() else t)(torch.as_tensor(a)))
    def _A_setup():
        B, S, D = 1, 2048, 576
        Df = D // 2 + 1
        return {
            "x": _w((lambda *s: torch.randn(*s, dtype=torch.bfloat16) * 0.05)(B, S, D)),
            "w_r": _w((lambda *s: torch.randn(*s, dtype=torch.bfloat16) * 0.4)(S, Df) * 0.02),
            "w_i": _w((lambda *s: torch.randn(*s, dtype=torch.bfloat16) * 0.4)(S, Df) * 0.02),
        }
    _A_in = _A_setup()

    def _B_setup():
        B, S, D, F = 1, 2048, 576, 4608
        return {
            "x": _w((lambda *s: torch.randn(*s, dtype=torch.bfloat16) * 0.05)(B, S, D)),
            "w1": _w((lambda *s: torch.randn(*s, dtype=torch.bfloat16) * 3.2)(D, F) * (D ** -0.5)),
            "w2": _w((lambda *s: torch.randn(*s, dtype=torch.bfloat16) * 0.05)(F, D) * (F ** -0.5)),
        }
    _B_in = _B_setup()

    return {
        "A_x": _A_in["x"],
        "A_w_r": _A_in["w_r"],
        "A_w_i": _A_in["w_i"],
        "B_x": _B_in["x"],
        "B_w1": _B_in["w1"],
        "B_w2": _B_in["w2"],
        "gate_w": _w((lambda *s: torch.randn(*s, dtype=torch.bfloat16) * 0.05)(576) * 16.0),
    }

def reference(A_x, A_w_r, A_w_i, B_x, B_w1, B_w2, gate_w):
    def _A_ref(x, w_r, w_i):
        B, S, D = x.shape
        X = (lambda x, axes=(-2,-1): torch.fft.rfft2(x.float(), dim=axes))(x, axes=(-2, -1))
        W = w_r + 1j * w_i
        X = X * W
        y = (lambda x, s, axes=(-2,-1): torch.fft.irfft2(x, s=s, dim=axes).to(torch.bfloat16))(X, (S, D), axes=(-2, -1))
        return y

    def _B_ref(x, w1, w2):
        h = torch.einsum("bsd,df->bsf", x, w1)
        h = _silu(h)
        out = torch.einsum("bsf,fd->bsd", h, w2)
        return out

    x = A_x
    g = _sigmoid((x * gate_w).sum(-1, keepdims=True))
    a = _A_ref(x, A_w_r, A_w_i)
    b = _B_ref(x, B_w1, B_w2)
    return g * a + (1 - g) * b
```

```python
import re
TRANS = ("v_exp_f32","v_log_f32","v_rcp_f32","v_rsq_f32","v_sqrt_f32","v_sin_f32","v_cos_f32")
RE = re.compile(r'\b([vas])(\d+)\b|\b([vas])\[(\d+):(\d+)\]|\b(vcc|m0|exec|scc)\b')
def regs(tok):
    out=[]
    for m in RE.finditer(tok):
        if m.group(1): out.append(m.group(1)+m.group(2))
        elif m.group(3): out += [m.group(3)+str(i) for i in range(int(m.group(4)),int(m.group(5))+1)]
        else: out.append(m.group(6))
    return out
def split_ops(s):
    ops=[];d=0;c=""
    for ch in s:
        if ch=='[': d+=1
        if ch==']': d-=1
        if ch==',' and d==0: ops.append(c.strip()); c=""
        else: c+=ch
    if c.strip(): ops.append(c.strip())
    return ops
class Ins:
    def __init__(s, text):
        s.text=text
        p=text.split(None,1); s.op=p[0]; rest=p[1] if len(p)>1 else ""
        ops=split_ops(rest); s.ops=ops
        op=s.op
        s.mfma=op.startswith("v_mfma"); s.valu=op.startswith("v_") and not s.mfma
        s.salu=op.startswith("s_"); s.ds=op.startswith("ds_")
        s.vmem=op.startswith("buffer_") or op.startswith("global_")
        s.trans=any(op.startswith(t) for t in TRANS); s.dot=op.startswith("v_dot")
        s.dpp=("quad_perm" in text or "row_" in text); s.lds=s.vmem and re.search(r'\blds\b',text) is not None
        s.store=s.vmem and ("store" in op or "atomic" in op)
        s.w=[]; s.r=[]
        if s.mfma:
            s.w=regs(ops[0]); s.a=regs(ops[1])+regs(ops[2]); s.c=regs(ops[3]); s.r=s.a+s.c
            s.passes=8 if "32x32" in op else 4
        elif s.valu:
            s.w=regs(ops[0]);
            for o in ops[1:]: s.r+=regs(o)
            if op.startswith(("v_fmac","v_dot2c","v_writelane","v_permlane")) : s.r+=s.w
            if op.startswith("v_permlane") and "swap" in op: s.w+=regs(ops[1])
            if op.startswith("v_cndmask") and len(ops)==3: s.r.append("vcc")
            if "_co_" in op: s.w+=regs(ops[1])
        elif s.ds:
            if op.startswith("ds_read") or op.startswith("ds_bpermute") or op.startswith("ds_swizzle"):
                s.w=regs(ops[0])
                for o in ops[1:]: s.r+=regs(o)
            else:
                for o in ops: s.r+=regs(o)
        elif s.vmem:
            if s.lds or (s.store and "sc0" not in text.split() or "_store" in op):
                for o in ops: s.r+=regs(o)
                if s.lds: s.r.append("m0")
            else:
                s.w=regs(ops[0])
                for o in ops[1:]: s.r+=regs(o)
                if "d16" in op or s.store: s.r+=s.w
            s.data=regs(ops[0] if op.startswith("buffer") else (ops[1] if len(ops)>1 else "")) if s.store else []
        elif s.salu:
            if op.startswith(("s_cmp","s_waitcnt","s_barrier","s_nop","s_cbranch","s_branch","s_endpgm","s_setprio","s_setpc","s_sleep","s_bitcmp")):
                for o in ops: s.r+=regs(o)
            else:
                s.w=regs(ops[0])
                for o in ops[1:]: s.r+=regs(o)
                if "saveexec" in op: s.w.append("exec")
class Asm:
    def __init__(s):
        s.L=[]; s.t=0; s.hz={}
        s.lq=[]; s.vq=[]; s.nops=0
    def raw(s,x): s.L.append(x)
    def need(s,i):
        n=0
        def chk(kind,r,d):
            nonlocal n
            k=(kind,r)
            if k in s.hz:
                tp,extra=s.hz[k]
                dd=d(extra) if callable(d) else d
                n=max(n, dd-(s.t-tp-1))
        if i.mfma:
            for r in i.r: chk("valuw",r,2)
            for r in i.a: chk("mfmaw",r,lambda e: e[0]+4)
            for r in i.c: chk("mfmaw",r,lambda e: 0 if (e[1]==tuple(i.c) and e[0]==i.passes) else e[0]+2)
            for r in i.w:
                if r not in i.c: chk("mfmaw",r,lambda e: 0 if (e[1]==tuple(i.w) and e[0]==i.passes) else e[0]+2)
            for r in i.r: chk("dotw",r,3)
        if i.valu or i.vmem or i.ds:
            for r in i.r+i.w: chk("mfmaw",r,lambda e: e[0]+4)
        if i.valu:
            for r in i.w: chk("mfmac",r,lambda e: e-1)
            if not i.trans:
                for r in i.r: chk("transw",r,1)
            for r in i.r:
                if r[0]=='s' or r=="vcc": chk("valus",r,4 if i.op.startswith(("v_readlane","v_writelane")) else 2)
            if i.dpp or i.op.startswith("v_permlane"):
                for r in i.r: chk("valuw",r,2)
            if i.op.startswith(("v_readlane","v_readfirstlane")):
                for r in i.r: chk("valuw",r,1)
            for r in i.w: chk("stdata",r,2)
            for r in i.r+i.w: chk("dotw",r,lambda e: 0 if (e==i.op and r in i.w) else 3)
        if i.vmem or i.ds:
            for r in i.r:
                if r[0]=='s' or r=="vcc": chk("valus",r,5)
            for r in i.w: chk("stdata",r,1)
            for r in i.r: chk("dotw",r,3)
            for r in i.r: chk("transw",r,1)
        if i.lds: chk("m0w","m0",1)
        return n
    def __call__(s,text,tag=None):
        text=text.strip()
        if text.endswith(":") or text.startswith((".",";")):
            s.L.append(text); return
        i=Ins(text)
        n=s.need(i)
        while n>0:
            k=min(n,16); s.L.append(f"s_nop {k-1}"); s.t+=k; n-=k; s.nops+=1
        s.L.append(text)
        if i.mfma:
            for r in i.w: s.hz[("mfmaw",r)]=(s.t,(i.passes,tuple(i.w))); s.hz.pop(("valuw",r),None)
            for r in i.c: s.hz[("mfmac",r)]=(s.t,i.passes)
        elif i.valu:
            for r in i.w:
                if r[0] in "va" and r!="vcc":
                    s.hz[("valuw",r)]=(s.t,None)
                    if i.trans: s.hz[("transw",r)]=(s.t,None)
                    else: s.hz.pop(("transw",r),None)
                    if i.dot: s.hz[("dotw",r)]=(s.t,i.op)
                    else: s.hz.pop(("dotw",r),None)
                    s.hz.pop(("mfmaw",r),None)
                else: s.hz[("valus",r)]=(s.t,None)
        elif i.salu:
            for r in i.w:
                if r=="m0": s.hz[("m0w","m0")]=(s.t,None)
                s.hz.pop(("valus",r),None)
        if i.vmem and i.store and ("x4" in i.op or "x3" in i.op):
            for r in i.data: s.hz[("stdata",r)]=(s.t,None)
        if i.op=="s_nop": s.t+=int(i.ops[0])
        s.t+=1
        if i.ds: s.lq.append(tag)
        if i.vmem: s.vq.append(tag)
        if i.op=="s_waitcnt":
            m=re.search(r'lgkmcnt\((\d+)\)',text)
            if m: k=int(m.group(1)); s.lq=s.lq[len(s.lq)-k:] if k<len(s.lq) else s.lq
            if m and k==0: s.lq=[]
            m=re.search(r'vmcnt\((\d+)\)',text)
            if m: k=int(m.group(1)); s.vq=s.vq[len(s.vq)-k:] if k<len(s.vq) else s.vq
            if m and k==0: s.vq=[]
    def _cnt(s,q,tags,mx):
        if not isinstance(tags,(list,tuple,set)) or isinstance(tags,tuple): tags=[tags]
        idx=[k for k,t in enumerate(q) if t in tags]
        if not idx: return None
        return min(len(q)-1-max(idx),mx)
    def wait(s,l=None,v=None):
        a=s._cnt(s.lq,l,15) if l is not None else None
        b=s._cnt(s.vq,v,63) if v is not None else None
        p=[]
        if b is not None: p.append(f"vmcnt({b})")
        if a is not None: p.append(f"lgkmcnt({a})")
        if p: s("s_waitcnt "+" ".join(p))
    def fork(s): return (s.t,dict(s.hz),list(s.lq),list(s.vq))
    def restore(s,st): s.t,s.hz,s.lq,s.vq=st[0],dict(st[1]),list(st[2]),list(st[3])
    def join(s,states):
        hz={}
        for (t,h,lq,vq) in states:
            assert lq==states[0][2] and vq==states[0][3], "queue mismatch at join"
            for k,(tp,e) in h.items():
                age=t-tp
                if k not in hz or age<hz[k][0]: hz[k]=(age,e)
        s.t=10**6+s.t
        s.hz={k:(s.t-a,e) for k,(a,e) in hz.items()}
        s.lq=list(states[0][2]); s.vq=list(states[0][3])
    def reset(s): s.hz={}; s.lq=[]; s.vq=[]
    def text(s): return "\n".join(s.L)+"\n"
```

```python
from asmlib import Asm
NAME="gated_mix__spectral_gfnet__dense_activation_silu__prompt"
WS_PART=0; WS_R=0x1200000; WS_E=0x1440000; WS_G=0x1680000; WS_DBG=0x1700000
import struct
def f2u(x): return "0x%08x"%struct.unpack("<I",struct.pack("<f",x))[0]
def srd(a,d,b,size,off=None):
    if off is None:
        a(f"s_mov_b32 s{d}, s{b}"); a(f"s_and_b32 s{d+1}, s{b+1}, 0xffff")
    else:
        a(f"s_add_u32 s{d}, s{b}, {off}"); a(f"s_addc_u32 s{d+1}, s{b+1}, 0"); a(f"s_and_b32 s{d+1}, s{d+1}, 0xffff")
    a(f"s_mov_b32 s{d+2}, {size}"); a(f"s_mov_b32 s{d+3}, 0x20000")
def khead(a,k):
    a(f".globl {k}"); a(".p2align 8"); a(f".type {k},@function"); a(f"{k}:"); a.reset()
def kdesc(k,vg,acc):
    return [".p2align 6",f".amdhsa_kernel {k}",f"  .amdhsa_next_free_vgpr {vg}","  .amdhsa_next_free_sgpr 102",f"  .amdhsa_accum_offset {acc}",
      "  .amdhsa_group_segment_fixed_size 0","  .amdhsa_kernarg_size 80","  .amdhsa_user_sgpr_count 2","  .amdhsa_user_sgpr_kernarg_segment_ptr 1",
      "  .amdhsa_system_sgpr_workgroup_id_x 1",".end_amdhsa_kernel"]
def vr(b,n): return f"v[{b}:{b+n-1}]" if n>1 else f"v{b}"
def cos_mod(a,dst,n,tmp,phase=None,smagic="s90",s576="s91"):
    L=[f"v_mul_hi_u32 v{tmp}, v{n}, {smagic}", f"v_mul_u32_u24 v{tmp}, {s576}, v{tmp}", f"v_sub_u32 v{tmp}, v{n}, v{tmp}", f"v_cvt_f32_u32 v{tmp}, v{tmp}"]
    if phase is None: L.append(f"v_mul_f32 v{tmp}, {f2u(1/576)}, v{tmp}")
    else: L.append(f"v_fmamk_f32 v{tmp}, v{tmp}, {f2u(1/576)}, v{phase}")
    L.append(f"v_cos_f32 v{dst}, v{tmp}")
    return L
def tile_dma(a,srdn,vo0,vo1,soffs,w_m0base,tag):
    for p in range(9):
        a(f"s_add_u32 m0, {w_m0base}, {p*8192}")
        a(f"buffer_load_dwordx4 v{vo0}, s[{srdn}:{srdn+3}], {soffs[p]} offen lds",tag)
        a(f"buffer_load_dwordx4 v{vo1}, s[{srdn}:{srdn+3}], {soffs[p]} offen offset:1024 lds",tag)
def tile_voff(a,vo0,vo1,lane,wv,rowpitch,t0,t1):
    a(f"v_lshrrev_b32 v{t0}, 3, v{lane}")
    a(f"v_lshrrev_b32 v{t1}, 1, v{t0}")
    a(f"v_xor_b32 v{t1}, v{t1}, v{lane}"); a(f"v_and_b32 v{t1}, 7, v{t1}")
    a(f"v_lshl_add_u32 v{t0}, v{wv}, 4, v{t0}")
    a(f"v_mul_u32_u24 v{t0}, {rowpitch}, v{t0}")
    a(f"v_lshl_add_u32 v{vo0}, v{t1}, 4, v{t0}")
    a(f"v_xor_b32 v{t1}, 4, v{t1}")
    a(f"v_lshl_add_u32 v{vo1}, v{t1}, 4, v{t0}")
    a(f"v_add_u32 v{vo1}, {8*rowpitch-1024}, v{vo1}")
def code_prefetch(a,start,end,sidx,junk,tmp,lane_all,s0=92):
    a(f"s_getpc_b64 s[{s0}:{s0+1}]"); lab=f"Lpc_{start}"; a(f"{lab}:")
    a(f"s_sub_u32 s{s0}, s{s0}, {lab}-{start}"); a(f"s_subb_u32 s{s0+1}, s{s0+1}, 0")
    a(f"v_and_b32 v{tmp}, 31, v{lane_all}"); a(f"s_lshl_b32 s{s0+2}, {sidx}, 5"); a(f"v_add_u32 v{tmp}, s{s0+2}, v{tmp}")
    a(f"v_lshlrev_b32 v{tmp}, 6, v{tmp}"); a(f"s_mov_b32 s{s0+2}, {end}-{start}-4"); a(f"v_min_u32 v{tmp}, s{s0+2}, v{tmp}"); a(f"v_and_b32 v{tmp}, -4, v{tmp}")
    a(f"global_load_dword v{junk}, v{tmp}, s[{s0}:{s0+1}]","junk")
```

```python
from common import *
RING=73728; NSLOT=10; D=9; P=2
PX=24576
S0,S1=96,160
AB=72
def XB(t,mt):
    i=8*t+4*mt
    return f"a[{i}:{i+3}]" if i<256 else vr(224+i-256,4)
LOG2E=f2u(-1.4426950408889634)
def silu_items(base,n,packdst):
    it=[]
    for g in range(0,n,4):
        T=[40+(g//4%2)*4+k for k in range(4)]
        for k in range(4): it.append(f"v_mul_f32 v{T[k]}, {LOG2E}, v{base+g+k}")
        for k in range(4): it.append(f"v_exp_f32 v{T[k]}, v{T[k]}")
        for k in range(4): it.append(f"v_add_f32 v{T[k]}, 1.0, v{T[k]}")
        for k in range(4): it.append(f"v_rcp_f32 v{T[k]}, v{T[k]}")
        for k in range(4): it.append(f"v_mul_f32 v{base+g+k}, v{base+g+k}, v{T[k]}")
        it.append(f"v_cvt_pk_bf16_f32 v{packdst+g//2}, v{base+g}, v{base+g+1}")
        it.append(f"v_cvt_pk_bf16_f32 v{packdst+g//2+1}, v{base+g+2}, v{base+g+3}")
    return it
def silu_strip(S,imm0,tag):
    it=[]
    for blk in range(2):
        for mt in range(2):
            ti=blk*2+mt; pk=48+8*(ti%2)
            if ti>=2: it.append(('wait',(tag,ti-2),None))
            x=silu_items(S+16*ti,16,pk)
            it+=x[:44]+[(f"ds_write_b128 v14, {vr(pk,4)} offset:{imm0+(2*blk)*2048+mt*1024}",(tag,'h'))]
            it+=x[44:]+[(f"ds_write_b128 v14, {vr(pk+4,4)} offset:{imm0+(2*blk+1)*2048+mt*1024}",(tag,ti))]
    return it
def store_strip(S,sreg,SC):
    it=[]
    for blk in range(2):
        for q in range(4):
            u=88+4*(q%2)
            for mt in range(2):
                b=S+16*(2*blk+mt)+4*q
                it.append(f"v_cvt_pk_bf16_f32 v{u+2*mt}, v{b}, v{b+1}"); it.append(f"v_cvt_pk_bf16_f32 v{u+2*mt+1}, v{b+2}, v{b+3}")
            it.append((f"buffer_store_dwordx4 {vr(u,4)}, v{12 if blk==0 else 30}, s[20:23], {sreg} offen offset:{q*1024}{SC}",'st'))
    return it
STEPS=[]
for ph in range(2):
    jobs=[('Q',9),('A',36),('B',36)] if ph==0 else [('A',36),('B',36),('Q',9)]
    for nm,n in jobs:
        for k in range(n): STEPS.append((ph,nm,k))
COL={(0,'A'):63,(0,'B'):64,(0,'Q'):65,(1,'A'):66,(1,'B'):67,(1,'Q'):68}
def dma_items(n,piece):
    if n>=len(STEPS): return []
    ph,nm,k=STEPS[n]; pitch=9216 if ph==0 else 1152; rb=44 if ph==0 else 54
    it=[]
    if piece==0:
        it.append(f"s_add_u32 m0, s41, {(n%NSLOT)*2048}")
        if nm=='Q': it.append(f"s_add_u32 s42, s{rb+k}, s{COL[(ph,nm)]}")
        elif k%4==0: it.append(f"s_add_u32 s42, s{rb+k//4}, s{COL[(ph,nm)]}")
        else: it.append(f"s_add_u32 s42, s42, {16*pitch}")
    it.append((f"buffer_load_dwordx4 v{4+2*ph+piece}, s[{12+4*ph}:{15+4*ph}], s42 offen{' offset:1024' if piece else ''} lds",('D',n,piece)))
    return it
def put(a,x):
    if isinstance(x,str): a(x)
    elif x[0]=='wait': a.wait(l=x[1],v=x[2])
    elif x[0]=='bar': a("s_barrier")
    else: a(x[0],x[1])
def aread(a,u):
    n=u//2
    if n>=len(STEPS): return
    ph=STEPS[n][0]; blk=u%2
    if blk==0: a.wait(v=('D',n,1))
    b=AB+4*(u%4); o=(n%NSLOT)*2048
    a(f"ds_read_b64_tr_b16 {vr(b,2)}, v{8+2*ph+blk} offset:{o}",('Ax',u))
    a(f"ds_read_b64_tr_b16 {vr(b+2,2)}, v{8+2*ph+blk} offset:{o+(512 if ph==0 else 1024)}",('A',u))
def hread(t,mt):
    o=t*2048+mt*1024
    return (f"ds_read_b128 {XB(t,mt)}, v{12 if o<32768 else 13} offset:{o if o<32768 else o-32768}",('B',t,mt))
def job(a,n0,ns,tile,slot,wins,jit=None):
    gaps=[[] for _ in range(ns*4)]
    for s0,s1,items in wins:
        g0,g1=int(s0*4),int(s1*4); m=g1-g0
        for k,x in enumerate(items): gaps[g0+(k*m)//len(items)].append(x)
    for s in range(ns):
        n=n0+s; t=slot(s)
        for blk in range(2):
            u=2*n+blk; fb=AB+4*(u%4)
            a.wait(l=[('A',u),('B',t,0),('B',t,1)])
            for mt in range(2):
                d=vr(tile(blk,mt),16)
                a(f"v_mfma_f32_32x32x16_bf16 {d}, {vr(fb,4)}, {XB(t,mt)}, {d if s>0 else 0}")
                if mt==0: aread(a,u+P)
                else:
                    for x in dma_items(n+D,blk): put(a,x)
                    if jit:
                        for x in jit(s,blk): put(a,x)
                for x in gaps[s*4+blk*2+mt]: put(a,x)
def gen_k1(a,K,SC=" sc0 sc1",last_label=None,dbg=0):
    khead(a,K)
    a("s_cmp_ge_u32 s2, 256"); a("s_cbranch_scc1 Lk1_end")
    a("s_load_dwordx2 s[4:5], s[0:1], 0"); a("s_load_dwordx4 s[76:79], s[0:1], 32"); a("s_load_dwordx2 s[80:81], s[0:1], 48"); a("s_load_dwordx2 s[6:7], s[0:1], 72")
    a("v_and_b32 v1, 63, v0"); a("v_lshrrev_b32 v2, 6, v0")
    a("s_and_b32 s36, s2, 7"); a("s_lshr_b32 s37, s2, 3"); a("v_readfirstlane_b32 s38, v2")
    tile_voff(a,28,29,1,2,32*1152,40,41)
    a("s_mul_i32 s40, s37, 57"); a("s_lshr_b32 s40, s40, 9"); a("s_mul_i32 s40, s40, 9"); a("s_sub_u32 s40, s37, s40")
    a("s_mul_i32 s39, s37, 5"); a("s_lshr_b32 s39, s39, 2"); a("s_mul_i32 s3, s39, 57"); a("s_lshr_b32 s3, s3, 9"); a("s_mul_i32 s3, s3, 9"); a("s_sub_u32 s39, s39, s3")
    a("s_mul_i32 s3, s37, 1152")
    for p in range(9):
        if p==0: a("s_mov_b32 s44, s39")
        else:
            a(f"s_add_u32 s{44+p}, s{43+p}, 1"); a(f"s_cmp_eq_u32 s{44+p}, 9"); a(f"s_cselect_b32 s{44+p}, 0, s{44+p}")
        a(f"s_lshl_b32 s{54+p}, s{44+p}, 7"); a(f"s_add_u32 s{54+p}, s{54+p}, s3")
    a("s_lshl_b32 s43, s38, 11")
    a("s_waitcnt lgkmcnt(0)")
    srd(a,8,4,2359296)
    tile_dma(a,8,28,29,[f"s{54+p}" for p in range(9)],"s43",'x')
    srd(a,32,80,1152)
    a("v_and_b32 v40, 7, v1"); a("v_lshlrev_b32 v40, 4, v40")
    a("s_cmp_lg_u32 s38, 3"); a("s_cbranch_scc1 Lk1_nogw")
    for p in range(9):
        a(f"s_lshl_b32 s3, s{44+p}, 7"); a(f"buffer_load_dwordx4 {vr(132+4*p,4)}, v40, s[32:35], s3 offen",'x')
    a("Lk1_nogw:")
    a("s_mul_i32 s3, s36, 1152"); srd(a,12,76,0,"s3"); a("s_sub_u32 s14, 5308416, s3")
    a("s_mul_i32 s3, s36, 663552"); srd(a,16,78,663552,"s3")
    for p in range(9): a(f"s_mul_i32 s{44+p}, s{44+p}, {64*9216}")
    def S(dst,x):
        a(f"s_add_u32 {dst}, {x}, s40"); a(f"s_sub_u32 s3, {dst}, 9"); a(f"s_cmp_ge_u32 {dst}, 9"); a(f"s_cselect_b32 {dst}, s3, {dst}")
    S("s65",8); a("s_lshl_b32 s68, s65, 7"); a(f"s_mul_i32 s3, s38, {16*9216}"); a("s_add_u32 s65, s68, s3")
    a(f"s_mul_i32 s41, s38, {NSLOT*2048}"); a(f"s_add_u32 s41, s41, {RING}")
    a("v_lshrrev_b32 v40, 3, v1"); a("v_bfe_u32 v41, v1, 4, 1"); a("v_lshlrev_b32 v41, 2, v41"); a("v_xor_b32 v41, v41, v1"); a("v_and_b32 v41, 7, v41"); a("v_lshlrev_b32 v41, 4, v41")
    a("v_mul_u32_u24 v4, 9216, v40"); a("v_add_u32 v4, v4, v41"); a(f"v_add_u32 v5, {8*9216-1024}, v4")
    a("v_mul_u32_u24 v6, 1152, v40"); a("v_add_u32 v6, v6, v41"); a(f"v_add_u32 v7, {8*1152-1024}, v6")
    for n in range(D):
        for pc in range(2):
            for x in dma_items(n,pc): put(a,x)
    code_prefetch(a,K,last_label or "Lk1_end","s37",39,40,0)
    a("s_lshl_b32 s69, s38, 1"); S("s63","s69"); a("s_add_u32 s69, s69, 1"); S("s64","s69")
    a("s_lshl_b32 s69, s63, 13"); a("s_lshl_b32 s70, s64, 13"); a("s_lshl_b32 s71, s68, 6")
    a("s_lshl_b32 s63, s63, 7"); a("s_lshl_b32 s64, s64, 7"); a("s_mov_b32 s66, s63"); a("s_mov_b32 s67, s64")
    a(f"s_mul_i32 s3, s38, {16*1152}"); a("s_add_u32 s68, s68, s3")
    for cb in range(9):
        x = 8 if cb==0 else (2*(cb-1) if cb<=4 else 2*(cb-5)+1)
        S(f"s{54+cb}",x); a(f"s_mul_i32 s{54+cb}, s{54+cb}, {64*1152}")
    a("s_lshl_b32 s3, s36, 5"); a("s_add_u32 s3, s3, s37"); a("s_mul_i32 s3, s3, 73728"); srd(a,20,6,73728,"s3")
    srd(a,24,6,2359296,WS_R); srd(a,28,6,8192,WS_G)
    a("s_mov_b32 s90, 7456541"); a("s_movk_i32 s91, 576")
    a("v_lshlrev_b32 v12, 4, v1"); a("v_add_u32 v13, 32768, v12"); a("v_add_u32 v30, 4096, v12")
    a("v_bfe_u32 v40, v1, 2, 2"); a("v_lshlrev_b32 v41, 7, v40")
    a("v_lshrrev_b32 v40, 1, v40"); a("v_lshl_add_u32 v41, v40, 6, v41")
    a("v_bfe_u32 v40, v1, 4, 1"); a("v_lshl_add_u32 v41, v40, 5, v41")
    a("v_and_b32 v40, 3, v1"); a("v_lshl_add_u32 v41, v40, 3, v41"); a("v_add_u32 v41, s41, v41")
    a("v_lshrrev_b32 v40, 5, v1")
    a("v_lshl_add_u32 v8, v40, 10, v41"); a("v_xor_b32 v9, 64, v8"); a("v_lshl_add_u32 v10, v40, 9, v41"); a("v_xor_b32 v11, 64, v10")
    a("s_lshl_b32 s3, s38, 13"); a("s_add_u32 s3, s3, 8192"); a("v_add_u32 v14, s3, v12")
    a("s_lshr_b32 s3, s38, 1"); a("s_lshl_b32 s3, s3, 12"); a("s_and_b32 s72, s38, 1"); a("s_lshl_b32 s72, s72, 10"); a("s_add_u32 s3, s3, s72"); a("v_add_u32 v15, s3, v12")
    for k in range(1,4):
        a(f"s_add_u32 s3, s38, {k}"); a("s_and_b32 s3, s3, 3"); a("s_mul_i32 s3, s3, 12288"); a(f"s_add_u32 s3, s3, {PX+(k-1)*4096}"); a(f"v_add_u32 v{15+k}, s3, v12")
    a("s_mul_i32 s3, s38, 12288"); a(f"s_add_u32 s3, s3, {PX}"); a("v_add_u32 v19, s3, v12")
    a("v_bfe_u32 v41, v1, 1, 3"); a("v_xor_b32 v41, v41, v40"); a("v_and_b32 v42, 31, v1"); a("v_lshlrev_b32 v42, 7, v42")
    for k in range(4):
        a(f"v_xor_b32 v43, {2*k}, v41"); a(f"v_lshl_add_u32 v{20+k}, v43, 4, v42"); a(f"v_add_u32 v{24+k}, 0x10000, v{20+k}")
    def xread(t,mt):
        if t<32: a(f"ds_read_b128 {XB(t,mt)}, v{20+t%4} offset:{(t//4)*8192+mt*4096}",('B',t,mt))
        else: a(f"ds_read_b128 {XB(t,mt)}, v{24+t%4} offset:{mt*4096}",('B',t,mt))
    a("s_lshl_b32 s73, s36, 1"); a("s_add_u32 s73, s73, s38"); a("s_add_u32 s3, s36, 16"); a("s_cmp_eq_u32 s38, 2"); a("s_cselect_b32 s73, s3, s73")
    a("s_cselect_b32 s3, s36, 0"); a("s_cmp_lt_u32 s3, 2"); a("s_cselect_b32 s74, 1, 0"); a("s_cmp_eq_u32 s38, 3"); a("s_cselect_b32 s74, 0, s74")
    a("s_cmp_eq_u32 s74, 0"); a("s_cbranch_scc1 Lk1_notask")
    st0=a.fork()
    a("v_and_b32 v57, 15, v1"); a("s_lshl_b32 s3, s73, 4"); a("v_add_u32 v57, s3, v57")
    a("v_bfe_u32 v59, v1, 4, 1"); a("v_cvt_f32_u32 v58, v59"); a("v_mul_f32 v58, 0.25, v58")
    a("v_lshl_add_u32 v59, v57, 1, v59"); a("v_cmp_eq_u32 vcc, 1, v59"); a("v_mov_b32 v59, 288"); a("v_cndmask_b32 v57, v57, v59, vcc"); a("v_cndmask_b32 v58, v58, 0, vcc") if False else None
    a("v_mov_b32 v59, 0"); a("v_cndmask_b32 v58, v58, v59, vcc")
    a("s_lshl_b32 s3, s39, 6"); a("v_lshrrev_b32 v59, 5, v1"); a("v_lshlrev_b32 v59, 3, v59"); a("v_add_u32 v59, s3, v59")
    for j in range(8):
        for (dst,o) in ((40+j,j),(48+j,j+560)):
            a(f"v_add_u32 v68, {o}, v59"); a("v_mul_u32_u24 v68, v68, v57")
            for x in cos_mod(a,dst,68,69,58): a(x)
    a("v_lshlrev_b32 v68, 4, v57")
    for x in cos_mod(a,56,68,69): a(x)
    a("v_add_f32 v56, v56, v56")
    a("v_and_b32 v71, 31, v1"); a("v_cvt_f32_u32 v68, v71"); a(f"v_mul_f32 v68, {f2u(1/64)}, v68")
    a("v_cmp_eq_u32 vcc, 0, v71"); a("v_mov_b32 v70, 0.5"); a("v_cndmask_b32 v69, v68, v70, vcc"); a("v_mov_b32 v70, -0.25") if False else None
    a(f"v_mov_b32 v70, {f2u(-0.25)}"); a("v_mov_b32 v71, 0"); a("v_cndmask_b32 v70, v70, v71, vcc")
    a("v_lshrrev_b32 v71, 5, v1"); a("v_lshlrev_b32 v71, 2, v71"); a("v_cvt_f32_u32 v71, v71")
    for s in range(4):
        for jj in range(0,8,2):
            for e in range(2):
                av=16*s+8*((jj+e)//4)+(jj+e)%4
                a(f"v_add_f32 v{88+e}, {f2u(float(av))}, v71")
                a(f"v_mul_f32 v{90+e}, v{88+e}, v68"); a(f"v_fma_f32 v{92+e}, v{88+e}, v69, v70")
                a(f"v_cos_f32 v{90+e}, v{90+e}"); a(f"v_cos_f32 v{92+e}, v{92+e}")
            a(f"v_cvt_pk_bf16_f32 v{160+8*s+jj//2}, v90, v91"); a(f"v_cvt_pk_bf16_f32 v{164+8*s+jj//2}, v92, v93")
    a.wait(v='x'); a("s_barrier")
    LA=3
    for t in range(LA): xread(t,0); xread(t,1)
    for t in range(36):
        cur,prv=(40,48) if t%2==0 else (48,40); fb=60+4*(t%2)
        for j in range(4): a(f"v_cvt_pk_bf16_f32 v{fb+j}, v{cur+2*j}, v{cur+2*j+1}")
        a.wait(l=[('B',t,0),('B',t,1)])
        if t+LA<36: xread(t+LA,0)
        a(f"v_mfma_f32_32x32x16_bf16 v[96:111], {XB(t,0)}, {vr(fb,4)}, {'v[96:111]' if t else 0}")
        if t<35:
            for j in range(4): a(f"v_fma_f32 v{prv+j}, v56, v{cur+j}, -v{prv+j}")
        if t+LA<36: xread(t+LA,1)
        a(f"v_mfma_f32_32x32x16_bf16 v[112:127], {XB(t,1)}, {vr(fb,4)}, {'v[112:127]' if t else 0}")
        if t<35:
            for j in range(4,8): a(f"v_fma_f32 v{prv+j}, v56, v{cur+j}, -v{prv+j}")
    a("v_and_b32 v68, 31, v1"); a("v_mul_u32_u24 v68, 73728, v68"); a("v_lshrrev_b32 v69, 5, v1"); a("v_lshl_add_u32 v68, v69, 4, v68")
    a("s_lshl_b32 s3, s73, 5"); a("s_add_u32 s3, s3, s37"); a("s_lshl_b32 s3, s3, 7")
    for k in range(16): a(f"v_cvt_pk_bf16_f32 v{192+k}, v{96+2*k}, v{97+2*k}")
    for s in range(4):
        for nt in range(2):
            d=vr(128+16*nt,16)
            a(f"v_mfma_f32_32x32x16_bf16 {d}, {vr(192+4*s,4)}, {vr(160+8*s+4*nt,4)}, {d if s else 0}")
    for nt in range(2):
        for qh in range(2):
            b=128+16*nt+8*qh; u=96+4*(2*nt+qh)
            for k in range(4): a(f"v_cvt_pk_bf16_f32 v{u+k}, v{b+2*k}, v{b+2*k+1}")
            a(f"buffer_store_dwordx4 {vr(u,4)}, v68, s[24:27], s3 offen offset:{nt*64+qh*32}",'R')
    a.vq=[x for x in a.vq if x!='R']
    a("s_branch Lk1_join0")
    e1=a.fork(); a.restore(st0)
    a("Lk1_notask:")
    a.wait(v='x'); a("s_barrier")
    for t in range(36): xread(t,0); xread(t,1)
    a("s_cmp_lg_u32 s38, 3"); a("s_cbranch_scc1 Lk1_nogate")
    stg=a.fork()
    a("s_lshl_b32 s3, s36, 3"); a("v_lshrrev_b32 v40, 3, v1"); a("v_add_u32 v40, s3, v40")
    a("v_lshrrev_b32 v41, 1, v40"); a("v_xor_b32 v41, v41, v1"); a("v_and_b32 v41, 7, v41"); a("v_lshlrev_b32 v41, 4, v41"); a("v_lshl_add_u32 v41, v40, 7, v41"); a("v_add_u32 v42, 0x10000, v41")
    for p in range(9): a(f"ds_read_b128 {vr(96+4*p,4)}, v{41 if p<8 else 42} offset:{p*8192 if p<8 else 0}")
    a("v_mov_b32 v43, 0"); a("s_waitcnt lgkmcnt(0)")
    for k in range(36): a(f"v_dot2_f32_bf16 v43, v{96+k}, v{132+k}, v43")
    a("v_add_f32_dpp v43, v43, v43 quad_perm:[1,0,3,2] row_mask:0xf bank_mask:0xf")
    a("v_add_f32_dpp v43, v43, v43 quad_perm:[2,3,0,1] row_mask:0xf bank_mask:0xf")
    a("v_add_f32_dpp v43, v43, v43 row_half_mirror row_mask:0xf bank_mask:0xf")
    a(f"v_mul_f32 v43, {LOG2E}, v43"); a("v_exp_f32 v43, v43"); a("v_add_f32 v43, 1.0, v43"); a("v_rcp_f32 v43, v43")
    a("s_lshl_b32 s3, s37, 8"); a("v_lshlrev_b32 v40, 2, v40")
    a("buffer_store_dword v43, v40, s[28:31], s3 offen",'R'); a.vq=[x for x in a.vq if x!='R']
    eg=a.fork();
    a("Lk1_nogate:"); a("s_waitcnt lgkmcnt(0)")
    e2=a.fork(); stg=(stg[0],stg[1],[],stg[3])
    a("Lk1_join0:")
    e1=(e1[0],e1[1],[],e1[3])
    a.join([e1,e2,stg])
    for u in range(P): aread(a,u)
    def variants(fn,name):
        for w in range(1,4):
            a(f"s_cmp_eq_u32 s38, {w}"); a(f"s_cbranch_scc1 L{name}_{w}")
        st=a.fork(); ends=[]
        for w in range(4):
            a.restore(st)
            if w: a(f"L{name}_{w}:")
            fn(w)
            if w<3: a(f"s_branch L{name}_j")
            ends.append(a.fork())
        a(f"L{name}_j:"); a.join(ends)
    variants(lambda w: job(a,0,9,lambda blk,mt: S1+16*((2*blk+mt-w)%4),lambda s:4*s+w,[]),"q1")
    w1=[('bar',)]+[(f"ds_write_b128 v{15+k}, {vr(S1+16*k+4*c,4)} offset:{c*1024}",'pw') for k in range(1,4) for c in range(4)]
    w2=[('wait','pw',None),('bar',)]+[(f"ds_read_b128 {vr(S1+16+4*c,4)}, v19 offset:{c*1024}",('pr',c)) for c in range(12)]
    w3=[]
    for k in range(3):
        w3.append(('wait',('pr',4*k+3),None))
        w3+=[f"v_add_f32 v{S1+r}, v{S1+r}, v{S1+16+16*k+r}" for r in range(16)]
    w3+=silu_items(S1,16,48)+[(f"ds_write_b128 v15, v[48:51]",'hq'),(f"ds_write_b128 v15, v[52:55] offset:2048",'hq')]
    job(a,9,36,lambda blk,mt:S0+16*(2*blk+mt),lambda s:s,[(1,5,w1),(7,11,w2),(12,33,w3),(35,36,[('wait','hq',None),('bar',)])])
    job(a,45,36,lambda blk,mt:S1+16*(2*blk+mt),lambda s:s,[(0.75,32,silu_strip(S0,0,'hA')),(33,35.5,[hread(t,mt) for t in range(3) for mt in range(2)]),(35.5,36,[('wait',('hA',3),None),('bar',)])])
    def jit(s,blk):
        it=[]
        if s==17 and blk==0: it+=[('wait',('hB',3),None),('bar',)]
        if s+3<36: it.append(hread(s+3,blk))
        return it
    job(a,81,36,lambda blk,mt:S0+16*(2*blk+mt),lambda s:s,[(0.75,16.75,silu_strip(S1,32768,'hB'))],jit)
    job(a,117,36,lambda blk,mt:S1+16*(2*blk+mt),lambda s:s,[(0.75,24,store_strip(S0,"s69",SC)),(30,31,[('bar',)])])
    def q2(w):
        job(a,153,9,lambda blk,mt:S0+16*(2*blk+mt),lambda s:4*s+w,[(0.75,8.5,store_strip(S1,"s70",SC))])
        for k in range(1,4):
            wd=(w+k)%4; bk,h=wd//2,wd%2
            for mt in range(2):
                for c in range(2): a(f"ds_write_b128 v{15+k}, {vr(S0+16*(2*bk+mt)+8*h+4*c,4)} offset:{(2*mt+c)*1024}")
        a("s_waitcnt lgkmcnt(0)"); a("s_barrier")
        for c in range(12): a(f"ds_read_b128 {vr(S1+4*c,4)}, v19 offset:{c*1024}",('pr',c))
        bk,h=w//2,w%2
        for k in range(3):
            a.wait(l=('pr',4*k+3))
            for mt in range(2):
                for r in range(8):
                    d=S0+16*(2*bk+mt)+8*h+r; a(f"v_add_f32 v{d}, v{d}, v{S1+16*k+8*mt+r}")
        for c in range(2):
            u=88+4*c
            for mt in range(2):
                b=S0+16*(2*bk+mt)+8*h+4*c
                a(f"v_cvt_pk_bf16_f32 v{u+2*mt}, v{b}, v{b+1}"); a(f"v_cvt_pk_bf16_f32 v{u+2*mt+1}, v{b+2}, v{b+3}")
            a(f"buffer_store_dwordx4 {vr(u,4)}, v{12 if bk==0 else 30}, s[20:23], s71 offen offset:{(2*h+c)*1024}{SC}",'st')
    variants(q2,"q2")
    a("Lk1_end:"); a("s_endpgm")
```

```python
from common import *
def gen_k3(a,K):
    khead(a,K)
    a("s_cmp_ge_u32 s2, 288"); a("s_cbranch_scc1 Lk3_end")
    a("s_load_dwordx2 s[4:5], s[0:1], 56"); a("s_load_dwordx2 s[6:7], s[0:1], 72")
    a("v_lshrrev_b32 v2, 6, v0"); a("v_and_b32 v1, 63, v0"); a("v_readfirstlane_b32 s38, v2")
    a("s_and_b32 s37, s2, 31"); a("s_lshr_b32 s36, s2, 5")
    tile_voff(a,28,29,1,2,1152,40,41)
    a("v_and_b32 v4, 15, v1"); a("v_lshrrev_b32 v5, 4, v1")
    a("v_lshrrev_b32 v6, 1, v5"); a("v_lshl_add_u32 v6, v2, 1, v6"); a("v_lshlrev_b32 v6, 10, v6"); a("v_and_b32 v7, 1, v5"); a("v_lshl_add_u32 v6, v7, 9, v6"); a("v_lshl_add_u32 v6, v4, 4, v6")
    a("s_mul_i32 s39, s37, 73728"); a("s_lshl_b32 s43, s38, 11"); a("s_lshl_b32 s3, s36, 13"); a("s_add_u32 s40, s39, s3")
    for p in range(9): a(f"s_add_u32 s{54+p}, s39, {128*p}")
    a("s_waitcnt lgkmcnt(0)")
    srd(a,8,6,2359296,WS_E); srd(a,12,6,18874368); srd(a,16,6,8192,WS_G); srd(a,20,4,2359296)
    tile_dma(a,8,28,29,[f"s{54+p}" for p in range(9)],"s43",'E')
    PT=64
    for j in range(8):
        for h in range(2): a(f"buffer_load_dwordx4 {vr(PT+8*j+4*h,4)}, v6, s[12:15], s40 offen offset:{256*h}",('P',j))
        if j<7: a(f"s_add_u32 s40, s40, {32*73728}")
    a("v_lshlrev_b32 v7, 2, v4"); a("s_lshl_b32 s3, s37, 8")
    for ta in range(4): a(f"buffer_load_dword v{8+ta}, v7, s[16:19], s3 offen offset:{64*ta}",'G')
    a("s_mov_b32 s90, 7456541"); a("s_movk_i32 s91, 576")
    a("s_lshl_b32 s3, s36, 6"); a("s_lshl_b32 s41, s38, 4"); a("s_add_u32 s41, s41, s3"); a("v_add_u32 v12, s41, v4")
    a("v_lshlrev_b32 v13, 2, v5"); a("v_mov_b32 v14, 0.25")
    for j in range(4):
        for (dc,ds,o) in ((32+j,36+j,j),(40+j,44+j,j+560)):
            a(f"v_add_u32 v15, {o}, v13"); a("v_mul_u32_u24 v15, v15, v12")
            L=cos_mod(a,dc,15,16)
            for x in L: a(x)
            a("v_add_f32 v16, v14, v16"); a(f"v_cos_f32 v{ds}, v16")
    a("v_lshlrev_b32 v15, 4, v12")
    for x in cos_mod(a,17,15,16): a(x)
    a("v_add_f32 v17, v17, v17")
    for b in range(18):
        cur,prv=(32,40) if b%2==0 else (40,32)
        if b==0:
            a("v_cmp_eq_u32 vcc, 0, v5"); a("v_and_b32 v15, 1, v12"); a("v_lshlrev_b32 v15, 31, v15"); a("v_or_b32 v15, 0.5, v15"); a("v_mov_b32 v16, 0.5")
            a("v_cndmask_b32 v16, v32, v16, vcc"); a("v_cndmask_b32 v15, v36, v15, vcc")
            a("v_cvt_pk_bf16_f32 v128, v16, v33"); a("v_cvt_pk_bf16_f32 v129, v34, v35"); a("v_cvt_pk_bf16_f32 v130, v15, v37"); a("v_cvt_pk_bf16_f32 v131, v38, v39")
        else:
            for j in range(4): a(f"v_cvt_pk_bf16_f32 v{128+4*b+j}, v{cur+2*j}, v{cur+2*j+1}")
        if b<17:
            for j in range(8): a(f"v_fma_f32 v{prv+j}, v17, v{cur+j}, -v{prv+j}")
    a("v_cvt_f32_u32 v13, v13"); a("v_cvt_f32_u32 v15, v4"); a(f"v_mul_f32 v15, {f2u(1/64)}, v15")
    a("v_and_b32 v18, 1, v4"); a("v_lshlrev_b32 v18, 31, v18"); a("v_or_b32 v18, 0.5, v18"); a("v_mov_b32 v19, 0.5")
    for ta in range(4):
        a(f"v_add_f32 v16, {f2u(ta*0.25)}, v15")
        for jj in range(0,8,2):
            for e in range(2):
                a(f"v_add_f32 v{20+e}, {f2u(float(16*((jj+e)//4)+(jj+e)%4))}, v13"); a(f"v_mul_f32 v{20+e}, v{20+e}, v16")
            for e in range(2): a(f"v_cos_f32 v{22+e}, v{20+e}"); a(f"v_sin_f32 v{24+e}, -v{20+e}")
            if jj==0: a("v_cndmask_b32 v22, v22, v19, vcc"); a("v_cndmask_b32 v24, v24, v18, vcc")
            a(f"v_cvt_pk_bf16_f32 v{200+4*ta+jj//2}, v22, v23"); a(f"v_cvt_pk_bf16_f32 v{216+4*ta+jj//2}, v24, v25")
    a("v_lshrrev_b32 v15, 2, v4"); a("v_cmp_eq_u32 vcc, v15, v5"); a("v_and_b32 v15, 1, v4"); a("v_lshlrev_b32 v15, 4, v15"); a("v_mov_b32 v16, 0x3f80"); a("v_lshlrev_b32 v16, v15, v16")
    a("v_mov_b32 v17, 0"); a("v_cndmask_b32 v16, v17, v16, vcc"); a("v_bfe_u32 v15, v4, 1, 1"); a("v_cmp_eq_u32 vcc, 0, v15")
    a("v_mov_b32 v32, 0"); a("v_mov_b32 v33, 0"); a("v_cndmask_b32 v34, v17, v16, vcc"); a("v_cndmask_b32 v35, v16, v17, vcc"); a("v_mov_b32 v36, 0"); a("v_mov_b32 v37, 0")
    a("v_bfe_u32 v15, v1, 1, 3"); a("v_xor_b32 v15, v15, v5"); a("v_lshlrev_b32 v16, 7, v4")
    a("v_lshl_add_u32 v20, v15, 4, v16"); a("v_xor_b32 v21, 64, v20"); a("v_add_u32 v22, 0x10000, v20"); a("v_add_u32 v23, 0x10000, v21")
    a("v_mul_u32_u24 v24, 36864, v4"); a("v_lshl_add_u32 v24, v5, 3, v24"); a("s_mul_i32 s3, s37, 1152"); a("s_lshl_b32 s41, s41, 1"); a("s_add_u32 s41, s41, s3")
    for ta in range(1,4): a(f"s_add_u32 s{41+ta}, s41, {ta*16*36864}")
    a.wait(v='E'); a("s_barrier")
    T=232; EB=40; NB=6
    def er(x):
        b,tl=x//4,x%4
        if b<18: a(f"ds_read_b128 {vr(EB+4*(x%NB),4)}, v{20+b%2+(2 if b>=16 else 0)} offset:{(b//2%8)*8192+tl*2048}",('e',x))
    for x in range(NB-1): er(x)
    for x in range(72):
        b,tl=x//4,x%4
        a.wait(l=('e',x))
        a(f"v_mfma_f32_16x16x32_bf16 {vr(T+4*tl,4)}, {vr(EB+4*(x%NB),4)}, {vr(128+4*b,4)}, {vr(T+4*tl,4) if b else 0}")
        er(x+NB-1)
    BA=128; AA=144
    for j in range(8):
        a.wait(v=('P',j))
        for h in range(2):
            a(f"v_mfma_f32_16x16x32_bf16 {vr(BA+4*h,4)}, v[34:37], {vr(PT+8*j+4*h,4)}, {vr(BA+4*h,4) if j else 0}")
            a(f"v_mfma_f32_16x16x32_bf16 {vr(BA+8+4*h,4)}, v[32:35], {vr(PT+8*j+4*h,4)}, {vr(BA+8+4*h,4) if j else 0}")
        if j==0:
            for k in range(8): a(f"v_cvt_pk_bf16_f32 v{40+k}, v{T+2*k}, v{T+2*k+1}")
            for s in range(2):
                for ta in range(4): a(f"v_mfma_f32_16x16x32_bf16 {vr(AA+4*ta,4)}, {vr(40+4*s,4)}, {vr(200+16*s+4*ta,4)}, {vr(AA+4*ta,4) if s else 0}")
    a.wait(v='G')
    for ta in range(4):
        a(f"v_sub_f32 v12, 1.0, v{8+ta}"); a(f"v_mul_f32 v13, {f2u(2.0/(2048*576))}, v{8+ta}")
        for r in range(4): a(f"v_mul_f32 v{AA+4*ta+r}, v13, v{AA+4*ta+r}")
        for r in range(4): a(f"v_fma_f32 v{AA+4*ta+r}, v12, v{BA+4*ta+r}, v{AA+4*ta+r}")
        a(f"v_cvt_pk_bf16_f32 v{48+2*ta}, v{AA+4*ta}, v{AA+4*ta+1}"); a(f"v_cvt_pk_bf16_f32 v{49+2*ta}, v{AA+4*ta+2}, v{AA+4*ta+3}")
        a(f"buffer_store_dwordx2 {vr(48+2*ta,2)}, v24, s[20:23], s{41+ta} offen")
    a("Lk3_end:"); a("s_endpgm")
```

```python
from common import *
def gen_km(a,K):
    khead(a,K)
    a("v_lshrrev_b32 v2, 6, v0"); a("v_and_b32 v1, 63, v0"); a("v_readfirstlane_b32 s38, v2")
    a("s_load_dwordx4 s[76:79], s[0:1], 8"); a("s_load_dwordx2 s[6:7], s[0:1], 72")
    a("s_lshl_b32 s3, s2, 2"); a("s_add_u32 s3, s3, s38"); a("s_cmp_ge_u32 s3, 594"); a("s_cbranch_scc1 Lkm_end")
    km_body(a,"s3",4096,0)
    a("Lkm_end:"); a("s_endpgm")
def km_body(a,stask,ldsper,ldsbase):
    a(f"s_mul_i32 s36, {stask}, 3641"); a("s_lshr_b32 s36, s36, 16"); a("s_mul_i32 s37, s36, 18"); a(f"s_sub_u32 s37, {stask}, s37")
    a(f"s_mul_i32 s41, s38, {ldsper}")
    if ldsbase: a(f"s_add_u32 s41, s41, {ldsbase}")
    a("s_and_b32 s39, s36, 31"); a("s_mul_i32 s39, s39, 18"); a("s_add_u32 s39, s39, s37"); a("s_lshl_b32 s39, s39, 12")
    a("v_lshlrev_b32 v3, 4, v1")
    a("v_and_b32 v4, 15, v1"); a("v_lshrrev_b32 v5, 4, v1")
    a("s_waitcnt lgkmcnt(0)")
    srd(a,8,6,2359296,WS_R); srd(a,12,76,1183744); srd(a,16,78,1183744); srd(a,20,6,2359296,WS_E)
    a("s_mov_b32 m0, s41")
    for q in range(4): a(f"buffer_load_dwordx4 v3, s[8:11], s39 offen offset:{q*1024} lds",'R')
    a("v_lshlrev_b32 v8, 8, v5"); a("v_add_u32 v6, s36, v8"); a("v_mul_u32_u24 v6, 578, v6")
    a("s_sub_u32 s3, 832, s36"); a("v_sub_u32 v7, s3, v8"); a("v_mul_u32_u24 v7, 578, v7")
    a("s_lshl_b32 s3, s37, 4"); a("v_add_u32 v8, s3, v4"); a("v_lshl_add_u32 v10, v8, 1, v6"); a("v_lshl_add_u32 v11, v8, 1, v7")
    rows=[0,1,2,3,16,17,18,19]
    for e,r in enumerate(rows): a(f"s_mov_b32 s{44+e}, {r*36992}")
    WR,WI,WR2,WI2=32,40,48,56
    for r in range(32,64): a(f"v_mov_b32 v{r}, 0")
    for e in range(8):
        a(f"buffer_load_short_d16_hi v{WR+e}, v10, s[12:15], s{44+e} offen",'W'); a(f"buffer_load_short_d16_hi v{WI+e}, v10, s[16:19], s{44+e} offen",'W')
        a(f"buffer_load_short_d16_hi v{WR2+e}, v11, s[12:15], s{44+7-e} offen",'W'); a(f"buffer_load_short_d16_hi v{WI2+e}, v11, s[16:19], s{44+7-e} offen",'W')
    NR,NI,NR2,NI2=64,72,80,88
    a("s_cmp_lg_u32 s37, 0"); a("s_cbranch_scc1 Lkm_nony")
    for r in range(64,96): a(f"v_mov_b32 v{r}, 0")
    for e in range(8):
        a(f"buffer_load_short_d16_hi v{NR+e}, v6, s[12:15], s{44+e} offen offset:576",'N'); a(f"buffer_load_short_d16_hi v{NI+e}, v6, s[16:19], s{44+e} offen offset:576",'N')
        a(f"buffer_load_short_d16_hi v{NR2+e}, v7, s[12:15], s{44+7-e} offen offset:576",'N'); a(f"buffer_load_short_d16_hi v{NI2+e}, v7, s[16:19], s{44+7-e} offen offset:576",'N')
    a.vq=[x for x in a.vq if x!='N']
    a("Lkm_nony:")
    a("v_lshlrev_b32 v8, 6, v4"); a("v_add_u32 v8, s36, v8"); a("v_cvt_f32_u32 v8, v8"); a(f"v_mul_f32 v8, {f2u(1/2048)}, v8"); a("v_add_f32 v9, 0.5, v8")
    a("v_lshlrev_b32 v12, 3, v5"); a("v_cvt_f32_u32 v12, v12")
    for jj in range(0,8,2):
        for e in range(2): a(f"v_add_f32 v{14+e}, {f2u(float(jj+e))}, v12")
        for mt in range(2):
            for e in range(2): a(f"v_mul_f32 v{16+e}, v{14+e}, v{8+mt}")
            for e in range(2): a(f"v_cos_f32 v{18+e}, v{16+e}"); a(f"v_sin_f32 v{20+e}, v{16+e}")
            a(f"v_cvt_pk_bf16_f32 v{96+8*mt+jj//2}, v18, v19"); a(f"v_cvt_pk_bf16_f32 v{100+8*mt+jj//2}, v20, v21")
    a("v_cvt_f32_u32 v8, v4"); a(f"v_mul_f32 v8, {f2u(1/2048)}, v8"); a(f"v_add_f32 v9, {f2u(16/2048)}, v8")
    a("v_lshlrev_b32 v12, 8, v5"); a("v_add_u32 v12, s36, v12"); a("v_cvt_f32_u32 v12, v12")
    for jj in range(0,8,2):
        for e in range(2): a(f"v_add_f32 v{14+e}, {f2u(64.0*(16*((jj+e)//4)+(jj+e)%4))}, v12")
        for nt in range(2):
            for e in range(2): a(f"v_mul_f32 v{16+e}, v{14+e}, v{8+nt}")
            for e in range(2): a(f"v_cos_f32 v{18+e}, v{16+e}"); a(f"v_sin_f32 v{20+e}, v{16+e}")
            a(f"v_cvt_pk_bf16_f32 v{112+8*nt+jj//2}, v18, v19"); a(f"v_cvt_pk_bf16_f32 v{116+8*nt+jj//2}, v20, v21")
    a("v_bfe_u32 v8, v1, 2, 2"); a("v_lshl_add_u32 v8, v5, 3, v8"); a("v_lshlrev_b32 v8, 7, v8")
    a("v_and_b32 v9, 1, v1"); a("v_lshl_add_u32 v8, v9, 4, v8"); a("v_bfe_u32 v9, v1, 1, 1"); a("v_lshl_add_u32 v8, v9, 3, v8"); a("v_add_u32 v8, s41, v8")
    a("s_cmp_eq_u32 s36, 32"); a("s_cselect_b32 s3, 64, 0"); a("v_add_u32 v9, s3, v8")
    a("s_and_b32 s3, s36, 31"); a("s_cmp_eq_u32 s3, 0"); a("s_cselect_b32 s40, 0, -1")
    a.wait(v='R')
    QA,QB,QC,QD,QCn,QDn=128,132,136,140,144,148
    for (dst,ad,o) in ((QA,9,0),(QB,9,32),(QC,8,64),(QD,8,96)):
        a(f"ds_read_b64_tr_b16 {vr(dst,2)}, v{ad} offset:{o}"); a(f"ds_read_b64_tr_b16 {vr(dst+2,2)}, v{ad} offset:{o+512}")
    a("v_mul_u32_u24 v13, 73728, v4"); a("v_lshl_add_u32 v13, v5, 4, v13"); a("s_mul_i32 s42, s36, 1152"); a("s_lshl_b32 s3, s37, 6"); a("s_add_u32 s42, s42, s3")
    a("s_add_u32 s43, s42, 1179648")
    a(f"s_add_u32 s52, s42, {32*1152}"); a(f"s_add_u32 s53, s43, {32*1152}")
    a("s_mov_b32 s54, 0x80008000")
    a("s_waitcnt lgkmcnt(0)")
    for k in range(8): a(f"v_and_b32 v{QC+k}, s40, v{QC+k}")
    for k in range(8): a(f"v_xor_b32 v{QCn+k}, s54, v{QC+k}")
    S=[152,160,168,176]
    for mt in range(2):
        TC,TS=vr(96+8*mt,4),vr(100+8*mt,4)
        for k,(x,y) in enumerate(((QA,QCn),(QD,QB),(QB,QDn),(QC,QA))):
            a(f"v_mfma_f32_16x16x32_bf16 {vr(S[k]+4*mt,4)}, {TC}, {vr(x,4)}, 0")
        for k,(x,y) in enumerate(((QA,QCn),(QD,QB),(QB,QDn),(QC,QA))):
            a(f"v_mfma_f32_16x16x32_bf16 {vr(S[k]+4*mt,4)}, {TS}, {vr(y,4)}, {vr(S[k]+4*mt,4)}")
    a("v_add_u32 v14, s36, v5"); a("v_cmp_eq_u32 vcc, 0, v14")
    a("s_waitcnt vmcnt(0)")
    a(f"v_cndmask_b32 v{WR2}, v{WR2}, v{WR}, vcc"); a(f"v_cndmask_b32 v{WI2}, v{WI2}, v{WI}, vcc")
    XR,XI,XR2,XI2=184,192,200,208
    for e in range(8):
        a(f"v_add_f32 v{XR+e}, v{S[0]+e}, v{S[1]+e}"); a(f"v_sub_f32 v{XR2+e}, v{S[0]+e}, v{S[1]+e}")
        a(f"v_sub_f32 v{XI+e}, v{S[2]+e}, v{S[3]+e}"); a(f"v_add_f32 v{XI2+e}, v{S[2]+e}, v{S[3]+e}")
    PR,PI,PR2,PI2=152,160,168,176
    for e in range(8):
        a(f"v_mul_f32 v{PR+e}, v{XR+e}, v{WR+e}"); a(f"v_mul_f32 v{PI+e}, v{XR+e}, v{WI+e}"); a(f"v_mul_f32 v{PR2+e}, v{XR2+e}, v{WR2+e}"); a(f"v_mul_f32 v{PI2+e}, v{XR2+e}, v{WI2+e}")
        a(f"v_fma_f32 v{PR+e}, -v{XI+e}, v{WI+e}, v{PR+e}"); a(f"v_fma_f32 v{PI+e}, v{XI+e}, v{WR+e}, v{PI+e}")
        a(f"v_fma_f32 v{PR2+e}, -v{XI2+e}, v{WI2+e}, v{PR2+e}"); a(f"v_fma_f32 v{PI2+e}, v{XI2+e}, v{WR2+e}, v{PI2+e}")
    a("s_cmp_lg_u32 s37, 0"); a("s_cbranch_scc1 Lkm_nony2")
    st=a.fork()
    a(f"v_cndmask_b32 v{NR2}, v{NR2}, v{NR}, vcc"); a(f"v_cndmask_b32 v{NI2}, v{NI2}, v{NI}, vcc")
    a("v_cmp_eq_u32 vcc, 0, v4"); a("s_and_saveexec_b64 s[56:57], vcc")
    for e in range(8):
        a(f"v_add_f32 v14, v{WR+e}, v{WR2+e}"); a(f"v_sub_f32 v15, v{WI+e}, v{WI2+e}"); a(f"v_add_f32 v16, v{NR+e}, v{NR2+e}"); a(f"v_sub_f32 v17, v{NI+e}, v{NI2+e}")
        a("v_add_f32 v18, v14, v16"); a("v_add_f32 v19, v15, v17"); a("v_sub_f32 v20, v14, v16"); a("v_sub_f32 v21, v15, v17")
        for r in range(18,22): a(f"v_mul_f32 v{r}, 0.25, v{r}")
        a(f"v_mul_f32 v{PR+e}, v{XR+e}, v18"); a(f"v_fma_f32 v{PR+e}, -v{XI+e}, v19, v{PR+e}"); a(f"v_fma_f32 v{PR+e}, v{XR2+e}, v20, v{PR+e}"); a(f"v_fma_f32 v{PR+e}, v{XI2+e}, v21, v{PR+e}")
        a(f"v_mul_f32 v{PI+e}, v{XR+e}, v19"); a(f"v_fma_f32 v{PI+e}, v{XI+e}, v18, v{PI+e}"); a(f"v_fma_f32 v{PI+e}, v{XR2+e}, v21, v{PI+e}"); a(f"v_fma_f32 v{PI+e}, -v{XI2+e}, v20, v{PI+e}")
        a(f"v_mul_f32 v{PR2+e}, v{XR2+e}, v18"); a(f"v_fma_f32 v{PR2+e}, v{XI2+e}, v19, v{PR2+e}"); a(f"v_fma_f32 v{PR2+e}, v{XR+e}, v20, v{PR2+e}"); a(f"v_fma_f32 v{PR2+e}, -v{XI+e}, v21, v{PR2+e}")
        a(f"v_mul_f32 v{PI2+e}, v{XI2+e}, v18"); a(f"v_fma_f32 v{PI2+e}, -v{XR2+e}, v19, v{PI2+e}"); a(f"v_fma_f32 v{PI2+e}, -v{XR+e}, v21, v{PI2+e}"); a(f"v_fma_f32 v{PI2+e}, -v{XI+e}, v20, v{PI2+e}")
    a("s_mov_b64 exec, s[56:57]")
    e2=a.fork(); a("Lkm_nony2:"); a.join([st,e2])
    AL,BE,GA,DE=184,192,200,208
    for e in range(8):
        a(f"v_add_f32 v{AL+e}, v{PR+e}, v{PR2+e}"); a(f"v_sub_f32 v{BE+e}, v{PI+e}, v{PI2+e}"); a(f"v_add_f32 v{GA+e}, v{PI+e}, v{PI2+e}"); a(f"v_sub_f32 v{DE+e}, v{PR+e}, v{PR2+e}")
    pa,pb,pbn,pg,pd,pdn=128,132,136,140,144,148
    for k in range(4):
        a(f"v_cvt_pk_bf16_f32 v{pa+k}, v{AL+2*k}, v{AL+2*k+1}"); a(f"v_cvt_pk_bf16_f32 v{pb+k}, v{BE+2*k}, v{BE+2*k+1}"); a(f"v_cvt_pk_bf16_f32 v{pbn+k}, -v{BE+2*k}, -v{BE+2*k+1}")
        a(f"v_cvt_pk_bf16_f32 v{pg+k}, v{GA+2*k}, v{GA+2*k+1}"); a(f"v_cvt_pk_bf16_f32 v{pd+k}, v{DE+2*k}, v{DE+2*k+1}"); a(f"v_cvt_pk_bf16_f32 v{pdn+k}, -v{DE+2*k}, -v{DE+2*k+1}")
    O=152
    for nt in range(2):
        UC,US=vr(112+8*nt,4),vr(116+8*nt,4)
        cmb=((pa,pbn),(pg,pd),(pb,pa),(pdn,pg))
        for k,(x,y) in enumerate(cmb): a(f"v_mfma_f32_16x16x32_bf16 {vr(O+16*nt+4*k,4)}, {vr(x,4)}, {UC}, 0")
        for k,(x,y) in enumerate(cmb): a(f"v_mfma_f32_16x16x32_bf16 {vr(O+16*nt+4*k,4)}, {vr(y,4)}, {US}, {vr(O+16*nt+4*k,4)}")
    for nt in range(2):
        for k in range(8): a(f"v_cvt_pk_bf16_f32 v{184+8*nt+k}, v{O+16*nt+2*k}, v{O+16*nt+2*k+1}")
    for nt in range(2): a(f"buffer_store_dwordx4 {vr(184+8*nt,4)}, v13, s[20:23], s{42+nt} offen")
    a("s_cmp_eq_u32 s40, 0"); a("s_cbranch_scc1 Lkm_noq")
    for nt in range(2): a(f"buffer_store_dwordx4 {vr(188+8*nt,4)}, v13, s[20:23], s{52+nt} offen")
    a("Lkm_noq:")
```

```python
import sys
from common import *
import k1,km,k3
def build(extra_empty=0,**kw):
    a=Asm()
    hdr=open("cdna_kernels/"+NAME+".s.ref").read().split("\n")
    H=[l for l in hdr if l.startswith(";") and "@launch" not in l and "Override" not in l and "grid=ceil" not in l]
    K1=NAME+"_kernel"
    H+=[f"; @launch kernel={K1} grid=(256,1,1) block=(256,1,1) lds={k1.RING+4*k1.NSLOT*2048}",
        "; @launch kernel=mstage_kernel grid=(149,1,1) block=(256,1,1) lds=16384"]
    H+=["; @launch kernel=empty_kernel grid=(1,1,1) block=(64,1,1) lds=0"]*extra_empty
    H+=["; @launch kernel=final_kernel grid=(288,1,1) block=(256,1,1) lds=73728"]
    for l in H: a.raw(l)
    a.raw('.amdgcn_target "amdgcn-amd-amdhsa--gfx950"'); a.raw(".text")
    k1.gen_k1(a,K1,last_label="Lk3_end",**kw); km.gen_km(a,"mstage_kernel"); k3.gen_k3(a,"final_kernel")
    if extra_empty: khead(a,"empty_kernel"); a("s_endpgm")
    a.raw('.section .rodata,"a"')
    for l in kdesc(K1,512,256)+kdesc("mstage_kernel",216,216)+kdesc("final_kernel",248,248)+(kdesc("empty_kernel",8,8) if extra_empty else []): a.raw(l)
    return a
if __name__=="__main__":
    kw=dict(x.split("=") for x in sys.argv[2:])
    a=build(**{k:(int(v) if v.lstrip('-').isdigit() else v) for k,v in kw.items()})
    open(sys.argv[1],"w").write(a.text()); print("lines",len(a.L),"nops",a.nops)
```

```python
from asmlib import Asm
NAME="gated_mix__spectral_gfnet__dense_activation_silu__prompt"
WS_PART=0; WS_R=0x1200000; WS_E=0x1440000; WS_G=0x1680000; WS_DBG=0x1700000
import struct
def f2u(x): return "0x%08x"%struct.unpack("<I",struct.pack("<f",x))[0]
def srd(a,d,b,size,off=None):
    if off is None:
        a(f"s_mov_b32 s{d}, s{b}"); a(f"s_and_b32 s{d+1}, s{b+1}, 0xffff")
    else:
        a(f"s_add_u32 s{d}, s{b}, {off}"); a(f"s_addc_u32 s{d+1}, s{b+1}, 0"); a(f"s_and_b32 s{d+1}, s{d+1}, 0xffff")
    a(f"s_mov_b32 s{d+2}, {size}"); a(f"s_mov_b32 s{d+3}, 0x20000")
def khead(a,k):
    a(f".globl {k}"); a(".p2align 8"); a(f".type {k},@function"); a(f"{k}:"); a.reset()
def kdesc(k,vg,acc):
    return [".p2align 6",f".amdhsa_kernel {k}",f"  .amdhsa_next_free_vgpr {vg}","  .amdhsa_next_free_sgpr 102",f"  .amdhsa_accum_offset {acc}",
      "  .amdhsa_group_segment_fixed_size 0","  .amdhsa_kernarg_size 80","  .amdhsa_user_sgpr_count 2","  .amdhsa_user_sgpr_kernarg_segment_ptr 1",
      "  .amdhsa_system_sgpr_workgroup_id_x 1",".end_amdhsa_kernel"]
def vr(b,n): return f"v[{b}:{b+n-1}]" if n>1 else f"v{b}"
def cos_mod(a,dst,n,tmp,phase=None,smagic="s100",s576="s101"):
    L=[f"v_mul_hi_u32 v{tmp}, v{n}, {smagic}", f"v_mul_u32_u24 v{tmp}, {s576}, v{tmp}", f"v_sub_u32 v{tmp}, v{n}, v{tmp}", f"v_cvt_f32_u32 v{tmp}, v{tmp}"]
    if phase is None: L.append(f"v_mul_f32 v{tmp}, {f2u(1/576)}, v{tmp}")
    else: L.append(f"v_fmamk_f32 v{tmp}, v{tmp}, {f2u(1/576)}, v{phase}")
    L.append(f"v_cos_f32 v{dst}, v{tmp}")
    return L
def tile_dma(a,srdn,vo0,vo1,soffs,w_m0base,tag):
    for p in range(9):
        a(f"s_add_u32 m0, {w_m0base}, {p*8192}")
        a(f"buffer_load_dwordx4 v{vo0}, s[{srdn}:{srdn+3}], {soffs[p]} offen lds",tag)
        a(f"buffer_load_dwordx4 v{vo1}, s[{srdn}:{srdn+3}], {soffs[p]} offen offset:1024 lds",tag)
def tile_voff(a,vo0,vo1,lane,wv,rowpitch,t0,t1):
    a(f"v_lshrrev_b32 v{t0}, 3, v{lane}")
    a(f"v_lshrrev_b32 v{t1}, 1, v{t0}")
    a(f"v_xor_b32 v{t1}, v{t1}, v{lane}"); a(f"v_and_b32 v{t1}, 7, v{t1}")
    a(f"v_lshl_add_u32 v{t0}, v{wv}, 4, v{t0}")
    a(f"v_mul_u32_u24 v{t0}, {rowpitch}, v{t0}")
    a(f"v_lshl_add_u32 v{vo0}, v{t1}, 4, v{t0}")
    a(f"v_xor_b32 v{t1}, 4, v{t1}")
    a(f"v_lshl_add_u32 v{vo1}, v{t1}, 4, v{t0}")
    a(f"v_add_u32 v{vo1}, {8*rowpitch-1024}, v{vo1}")
def code_prefetch(a,start,end,sidx,junk,tmp,lane_all,s0=92):
    a(f"s_getpc_b64 s[{s0}:{s0+1}]"); lab=f"Lpc_{start}"; a(f"{lab}:")
    a(f"s_sub_u32 s{s0}, s{s0}, {lab}-{start}"); a(f"s_subb_u32 s{s0+1}, s{s0+1}, 0")
    a(f"v_and_b32 v{tmp}, 31, v{lane_all}"); a(f"s_lshl_b32 s{s0+2}, {sidx}, 5"); a(f"v_add_u32 v{tmp}, s{s0+2}, v{tmp}")
    a(f"v_lshlrev_b32 v{tmp}, 6, v{tmp}"); a(f"s_mov_b32 s{s0+2}, {end}-{start}-4"); a(f"v_min_u32 v{tmp}, s{s0+2}, v{tmp}"); a(f"v_and_b32 v{tmp}, -4, v{tmp}")
    a(f"global_load_dword v{junk}, v{tmp}, s[{s0}:{s0+1}]","junk")

CYC=[0]
def stamp(a,k,on):
    if on: a.L.append(f"{'s_memtime' if CYC[0] else 's_memrealtime'} s[{76+2*k}:{77+2*k}]"); a.t+=1
def dump_stamps(a,on,kidx,wsreg,wave="s38"):
    if not on: return
    a.L.append(f"{'s_memtime' if CYC[0] else 's_memrealtime'} s[96:97]"); a("s_waitcnt lgkmcnt(0)")
    a("v_mov_b32 v40, 0")
    for k in range(12): a(f"v_writelane_b32 v40, s{76+2*k}, {k}")
    a(f"s_lshl_b32 s3, s2, 2"); a(f"s_add_u32 s3, s3, {wave}"); a("s_lshl_b32 s3, s3, 6"); a(f"s_add_u32 s3, s3, {WS_DBG+kidx*0x20000}")
    a("v_and_b32 v41, 63, v0"); a("v_lshlrev_b32 v41, 2, v41"); a("v_add_u32 v41, s3, v41")
    a("s_mov_b64 exec, 0xffff"); a(f"global_store_dword v41, v40, s[{wsreg}:{wsreg+1}]")
```

```python
from common import *
RING=73728; NSLOT=10; D=9; P=2
PX=24576
S0,S1=96,160
AB=72
TRIG=155648; G0=TRIG+6144; GATE=TRIG+7168; LDS_TOTAL=163840
WS_X=0; WS_R=0x1200000; WS_E=0x1480000; WS_FL=0x16C0000
OOB=0x4000000
SC=" sc1"
WP=[32+e for e in range(8)]; W2P=[88+e for e in range(8)]
def XB(t,mt):
    i=8*t+4*mt
    return f"a[{i}:{i+3}]" if i<256 else vr(224+i-256,4)
LOG2E=f2u(-1.4426950408889634)
def silu_items(base,n,packdst,c):
    it=[]
    for g in range(0,n,4):
        T=[40+(g//4%2)*4+k for k in range(4)]
        for k in range(4): it.append(f"v_mul_f32 v{T[k]}, {LOG2E}, v{base+g+k}")
        for k in range(4): it.append(f"v_exp_f32 v{T[k]}, v{T[k]}")
        for k in range(4): it.append(f"v_fma_f32 v{T[k]}, v{T[k]}, v{c}, v{c}")
        for k in range(4): it.append(f"v_rcp_f32 v{T[k]}, v{T[k]}")
        for k in range(4): it.append(f"v_mul_f32 v{base+g+k}, v{base+g+k}, v{T[k]}")
        it.append(f"v_cvt_pk_bf16_f32 v{packdst+g//2}, v{base+g}, v{base+g+1}")
        it.append(f"v_cvt_pk_bf16_f32 v{packdst+g//2+1}, v{base+g+2}, v{base+g+3}")
    return it
def silu_strip(S,imm0,tag):
    it=[]
    for blk in range(2):
        for mt in range(2):
            ti=blk*2+mt; pk=48+8*(ti%2)
            if ti>=2: it.append(('wait',(tag,ti-2),None))
            x=silu_items(S+16*ti,16,pk,3 if mt==0 else 31)
            it+=x[:44]+[(f"ds_write_b128 v14, {vr(pk,4)} offset:{imm0+(2*blk)*2048+mt*1024}",(tag,'h'))]
            it+=x[44:]+[(f"ds_write_b128 v14, {vr(pk+4,4)} offset:{imm0+(2*blk+1)*2048+mt*1024}",(tag,ti))]
    return it
def store_strip(S,sreg,tag):
    it=[]; k=0
    for blk in range(2):
        for p in range(2):
            for mt in range(2):
                u=88+4*(k%2); k+=1; b=S+16*(2*blk+mt)+8*p
                for c in range(4): it.append(f"v_cvt_pk_bf16_f32 v{u+c}, v{b+2*c}, v{b+2*c+1}")
                it.append((f"buffer_store_dwordx4 {vr(u,4)}, v{30 if mt==0 else 29}, s[4:7], {sreg} offen offset:{(2*blk+p)*256}{SC}",tag))
    return it
STEPS=[]
for ph in range(2):
    jobs=[('Q',9),('A',36),('B',36)] if ph==0 else [('A',36),('Q',9),('B',36)]
    for nm,n in jobs:
        for k in range(n): STEPS.append((ph,nm,k))
COL={(0,'A'):63,(0,'B'):64,(0,'Q'):65,(1,'A'):66,(1,'B'):67,(1,'Q'):68}
def dma_items(n,piece):
    if n>=len(STEPS): return []
    ph,nm,k=STEPS[n]; pitch=9216 if ph==0 else 1152; rb=44 if ph==0 else 54
    it=[]
    if piece==0:
        it.append(f"s_add_u32 m0, s41, {(n%NSLOT)*2048}")
        if nm=='Q': it.append(f"s_add_u32 s42, s{rb+k}, s{COL[(ph,nm)]}")
        elif k%4==0: it.append(f"s_add_u32 s42, s{rb+k//4}, s{COL[(ph,nm)]}")
        else: it.append(f"s_add_u32 s42, s42, {16*pitch}")
    it.append((f"buffer_load_dwordx4 v{4+2*ph+piece}, s[{12+4*ph}:{15+4*ph}], s42 offen{' offset:1024' if piece else ''} lds",('D',n,piece)))
    return it
def put(a,x):
    if isinstance(x,str): a(x)
    elif x[0]=='wait': a.wait(l=x[1],v=x[2])
    elif x[0]=='bar': a("s_barrier")
    elif x[0]=='grp':
        for y in x[1]: put(a,y)
    elif x[0]=='call': x[1](a)
    else: a(x[0],x[1])
def aread(a,u):
    n=u//2
    if n>=len(STEPS): return
    ph=STEPS[n][0]; blk=u%2
    if blk==0: a.wait(v=('D',n,1))
    b=AB+4*(u%4); o=(n%NSLOT)*2048
    a(f"ds_read_b64_tr_b16 {vr(b,2)}, v{8+2*ph+blk} offset:{o}",('Ax',u))
    a(f"ds_read_b64_tr_b16 {vr(b+2,2)}, v{8+2*ph+blk} offset:{o+(512 if ph==0 else 1024)}",('A',u))
def hread(t,mt):
    o=t*2048+mt*1024
    return (f"ds_read_b128 {XB(t,mt)}, v{12 if o<32768 else 13} offset:{o if o<32768 else o-32768}",('B',t,mt))
def spread(ns,wins):
    gaps=[[] for _ in range(ns*4)]
    for s0,s1,items in wins:
        g0,g1=int(s0*4),int(s1*4); m=g1-g0
        for k,x in enumerate(items): gaps[g0+(k*m)//len(items)].append(x)
    return gaps
def job(a,n0,ns,tile,slot,wins,jit=None):
    gaps=spread(ns,wins)
    for g,L in enumerate(gaps):
        if g%4 in (1,2): assert "m0" not in repr(L), (n0,g)
    for s in range(ns):
        n=n0+s; t=slot(s)
        for blk in range(2):
            u=2*n+blk; fb=AB+4*(u%4)
            a.wait(l=[('A',u),('B',t,0),('B',t,1)])
            for mt in range(2):
                d=vr(tile(blk,mt),16)
                a(f"v_mfma_f32_32x32x16_bf16 {d}, {vr(fb,4)}, {XB(t,mt)}, {d if s>0 else 0}")
                if mt==0: aread(a,u+P)
                else:
                    for x in dma_items(n+D,blk): put(a,x)
                    if jit:
                        for x in jit(s,blk): put(a,x)
                for x in gaps[s*4+blk*2+mt]: put(a,x)
FCH=S1+48; GPK=S1
def uread(e,buf):
    return [(f"ds_read_b128 {vr(56+8*buf+4*mt,4)}, v12 offset:{e*2048+mt*1024}",('U',e,mt)) for mt in range(2)]
def gd_init(scol,sk,f=FCH,c2=20):
    it=[f"s_lshr_b32 s3, {scol}, 1","v_add_u32 v64, s3, v22","v_add_u32 v65, 32, v64"]
    for blk in range(2):
        d=64+blk
        it.append(f"v_mul_u32_u24 v66, {sk}, v{d}"); it.append(f"v_add_u32 v67, v66, v{d}")
        x=cos_mod(None,f+8*blk+6,66,68,23); y=cos_mod(None,f+8*blk+7,67,69,23); z=cos_mod(None,c2+blk,d,70)
        for q in range(6): it+= [x[q],y[q],z[q]]
    it+=[f"v_add_f32 v{c2}, v{c2}, v{c2}",f"v_add_f32 v{c2+1}, v{c2+1}, v{c2+1}"]
    return it
def gd_step(pk,patch=None,f=FCH,c2=20):
    it=[]
    for jj in range(8):
        for blk in range(2):
            b=f+8*blk; it.append(f"v_fma_f32 v{b+jj}, v{c2+blk}, v{b+(jj-1)%8}, -v{b+(jj-2)%8}")
        if jj%2==1:
            for blk in range(2):
                b=f+8*blk
                if jj==1 and patch:
                    it.append(('grp',patch+[f"v_cndmask_b32 v71, v{b}, v24, vcc",f"v_cvt_pk_bf16_f32 v{pk+4*blk}, v71, v{b+1}"]))
                else: it.append(f"v_cvt_pk_bf16_f32 v{pk+4*blk+jj//2}, v{b+jj-1}, v{b+jj}")
    return it
def ext_step(a,tile,pk,e,buf,fill):
    gaps=spread(1,[(0,1,fill)]) if fill else [[]]*4
    a.wait(l=[('U',e,0),('U',e,1)])
    for blk in range(2):
        for mt in range(2):
            d=vr(tile(blk,mt),16)
            a(f"v_mfma_f32_32x32x16_bf16 {d}, {vr(pk+4*blk,4)}, {vr(56+8*buf+4*mt,4)}, {d}")
            for x in gaps[blk*2+mt]: put(a,x)
def setflag(k): return ('grp',[f"s_mov_b64 exec, {1<<k}",(f"buffer_store_dword v25, v25, s[4:7], 0 offen{SC}",'fl'),"s_mov_b64 exec, -1"])
TAIL=[]
def check(name,loads,cmps,tag):
    def f(a):
        a.wait(v=tag)
        for x in cmps: a(x)
        a(f"s_cbranch_scc1 Lsp_{name}"); a(f"Lbk_{name}:")
        L=[f"Lsp_{name}:","s_mov_b32 s53, 0",f"Lsl_{name}:"]+[x[0] for x in loads]+["s_waitcnt vmcnt(0)","s_add_u32 s53, s53, 1","s_cmp_ge_u32 s53, 20000",f"s_cbranch_scc1 Lbk_{name}"]+cmps+[f"s_cbranch_scc1 Lsl_{name}","s_nop 4",f"s_branch Lbk_{name}"]
        TAIL.extend(L)
    return ('call',f)
CNT=[0]
def cond(name,cmpi,body,brop="s_cbranch_scc0"):
    def f(a):
        CNT[0]+=1; lab=f"Lsk_{name}_{CNT[0]}"
        for x in cmpi: a(x)
        a(f"{brop} {lab}")
        st=a.fork(); body(a)
        e=a.fork(); a(f"{lab}:")
        a.join([st,(e[0],e[1],st[2],st[3])])
    return ('call',f)
def unit_loads(dst,vo,sbase,tag,n=8):
    it=[f"s_mov_b32 s43, {sbase}"]
    for jp in range(n):
        it.append((f"buffer_load_dwordx4 {vr(dst+4*jp,4)}, v{vo}, s[4:7], s43 offen{SC}",(tag,jp)))
        if jp<n-1: it.append("s_add_u32 s43, s43, 9216")
    return it
def unit_sum(src,acc,tag):
    it=[]
    for jp in range(8):
        it.append(('wait',None,(tag,jp)))
        for c in range(4):
            it.append(f"v_dot2_f32_bf16 v{acc+2*c}, v{src+4*jp+c}, s20, {'v%d'%(acc+2*c) if jp else 0}")
            it.append(f"v_dot2_f32_bf16 v{acc+2*c+1}, v{src+4*jp+c}, s21, {'v%d'%(acc+2*c+1) if jp else 0}")
    for c in range(4): it.append(f"v_cvt_pk_bf16_f32 v{acc+c}, v{acc+2*c}, v{acc+2*c+1}")
    return it
def gen_kf(a,K,dbg=0,G=2,RP=(0,0,0,4,4,4,4,2,0),WPOS=2,fin=1):
    TAIL.clear()
    khead(a,K)
    a("s_cmp_ge_u32 s2, 256"); a("s_cbranch_scc1 Lkf_end"); stamp(a,11,dbg)
    a("s_load_dwordx8 s[76:83], s[0:1], 0"); a("s_load_dwordx8 s[84:91], s[0:1], 32"); a("s_load_dwordx4 s[92:95], s[0:1], 64")
    a("v_and_b32 v1, 63, v0"); a("v_lshrrev_b32 v2, 6, v0")
    lg={1:0,2:1,4:2,8:3}[G]
    a(f"s_and_b32 s36, s2, {8//G-1}"); a(f"s_lshl_b32 s36, s36, {lg}"); a(f"s_bfe_u32 s3, s2, {(lg<<16)|3}"); a("s_add_u32 s36, s36, s3")
    a(f"s_bfe_u32 s37, s2, {(lg<<16)|(3-lg)}"); a(f"s_lshl_b32 s37, s37, {5-lg}"); a(f"s_lshr_b32 s3, s2, {3+lg}"); a("s_add_u32 s37, s37, s3")
    a("v_readfirstlane_b32 s38, v2")
    tile_voff(a,28,29,1,2,32*1152,40,41)
    a("s_mul_i32 s40, s37, 57"); a("s_lshr_b32 s40, s40, 9"); a("s_mul_i32 s40, s40, 9"); a("s_sub_u32 s40, s37, s40")
    a("s_mul_i32 s39, s37, 5"); a("s_lshr_b32 s39, s39, 2"); a("s_mul_i32 s3, s39, 57"); a("s_lshr_b32 s3, s3, 9"); a("s_mul_i32 s3, s3, 9"); a("s_sub_u32 s39, s39, s3")
    a("s_mul_i32 s3, s37, 1152")
    for p in range(9):
        if p==0: a("s_mov_b32 s44, s39")
        else:
            a(f"s_add_u32 s{44+p}, s{43+p}, 1"); a(f"s_cmp_eq_u32 s{44+p}, 9"); a(f"s_cselect_b32 s{44+p}, 0, s{44+p}")
        a(f"s_lshl_b32 s{54+p}, s{44+p}, 7"); a(f"s_add_u32 s{54+p}, s{54+p}, s3")
    a("s_lshl_b32 s63, s36, 1"); a("s_add_u32 s63, s63, s38"); a("s_cmp_lt_u32 s38, 2"); a("s_cselect_b32 s64, 1, 0")
    a("s_and_b32 s3, s36, 6"); a("s_lshl_b32 s3, s3, 2"); a("s_add_u32 s3, s3, s38"); a("s_cmp_eq_u32 s3, 10")
    a("s_cselect_b32 s64, 1, s64"); a("s_add_u32 s3, s36, 14"); a("s_cmp_eq_u32 s38, 2"); a("s_cselect_b32 s63, s3, s63")
    a("s_and_b32 s3, s38, 1"); a("s_lshl_b32 s75, s36, 1"); a("s_add_u32 s75, s75, s3"); a("s_mov_b32 s74, s37"); a("s_lshr_b32 s65, s38, 1")
    a("s_and_b32 s3, s36, 6"); a("s_lshl_b32 s3, s3, 2"); a("s_add_u32 s3, s3, s38"); a("s_add_u32 s66, s36, 10"); a("s_cmp_eq_u32 s3, 24")
    a("s_cselect_b32 s75, s66, s75"); a("s_cselect_b32 s65, 1, s65")
    a("s_lshl_b32 s3, s36, 2"); a("s_add_u32 s3, s3, s38"); a("s_cmp_eq_u32 s3, 5"); a("s_cselect_b32 s3, s37, 99"); a("s_cmp_lt_u32 s3, 18")
    a("s_cselect_b32 s75, s37, s75"); a("s_cselect_b32 s74, 32, s74"); a("s_cselect_b32 s65, 1, s65")
    a(f"v_mov_b32 v25, {OOB}")
    a("s_lshl_b32 s3, s63, 5"); a("s_add_u32 s3, s3, s37"); a("s_lshl_b32 s3, s3, 2"); a(f"s_add_u32 s3, s3, {WS_FL}"); a("s_cmp_eq_u32 s64, 1"); a(f"s_cselect_b32 s3, s3, {OOB}"); a("v_writelane_b32 v25, s3, 0")
    a("s_lshl_b32 s3, s75, 6"); a("s_add_u32 s3, s3, s74"); a("s_lshl_b32 s3, s3, 2"); a(f"s_add_u32 s3, s3, {WS_FL+4096}"); a("s_cmp_eq_u32 s65, 1"); a(f"s_cselect_b32 s3, s3, {OOB}"); a("v_writelane_b32 v25, s3, 1")
    a("s_lshl_b32 s3, s37, 4"); a("s_add_u32 s3, s3, s38"); a("s_lshl_b32 s3, s3, 3"); a("s_add_u32 s3, s3, s36"); a("s_lshl_b32 s3, s3, 2"); a(f"s_add_u32 s3, s3, {WS_FL+12288}")
    for ph in range(3):
        a(f"v_writelane_b32 v25, s3, {2+ph}")
        if ph<2: a("s_add_u32 s3, s3, 128")
    a(f"s_mul_i32 s41, s38, {NSLOT*2048}"); a(f"s_add_u32 s41, s41, {RING}")
    a("s_lshl_b32 s43, s38, 11"); a("v_lshlrev_b32 v12, 4, v1"); a("v_mov_b32 v40, 0")
    a("s_waitcnt lgkmcnt(0)")
    srd(a,8,76,2359296); srd(a,4,94,0x2000000); srd(a,28,88,1152)
    a("s_mov_b64 exec, 31"); a(f"buffer_store_dword v40, v25, s[4:7], 0 offen{SC}",'z'); a("s_mov_b64 exec, -1")
    a(f"s_add_u32 m0, s41, {9*2048}")
    a("buffer_load_dwordx4 v12, s[28:31], 0 offen lds",'gw'); a("buffer_load_dwordx4 v12, s[28:31], 0 offen offset:1024 lds",'gw')
    for p in range(9):
        a(f"s_add_u32 m0, s43, {p*8192}")
        a(f"buffer_load_dwordx4 v28, s[8:11], s{54+p} offen lds",('x',p))
        a(f"buffer_load_dwordx4 v29, s[8:11], s{54+p} offen offset:1024 lds",('x',p))
    a("s_mul_i32 s3, s36, 1152"); srd(a,12,84,0,"s3"); a("s_sub_u32 s14, 5308416, s3")
    a("s_mul_i32 s3, s36, 663552"); srd(a,16,86,663552,"s3")
    srd(a,20,78,1183744); srd(a,24,80,1183744); srd(a,32,90,2359296); a("s_mov_b64 s[72:73], s[92:93]")
    a("s_lshr_b32 s43, s2, 3")
    code_prefetch(a,K,"Lkf_last","s43",39,40,0)
    stamp(a,0,dbg)
    a("s_mov_b32 s28, s63"); a("s_mov_b32 s29, s64"); a("s_mov_b32 s30, s65")
    a("s_mul_i32 s31, s74, 18"); a("s_add_u32 s31, s31, s75"); a("s_lshl_b32 s31, s31, 12"); a(f"s_add_u32 s31, s31, {WS_R}")
    a("s_lshl_b32 s8, s74, 7"); a("s_cmp_eq_u32 s74, 32"); a("s_cselect_b32 s8, 64, s8"); a("s_lshl_b32 s3, s75, 12"); a("s_add_u32 s8, s8, s3"); a(f"s_add_u32 s8, s8, {WS_E}")
    a("s_cmp_eq_u32 s30, 1"); a(f"s_cselect_b32 s8, s8, {OOB}"); a("s_add_u32 s9, s8, 1179648")
    a("s_and_b32 s3, s74, 31"); a("s_cmp_eq_u32 s3, 0"); a(f"s_cselect_b32 s10, {OOB}, s8"); a("s_add_u32 s11, s10, 1179648")
    for p in range(9): a(f"s_lshl_b32 s{54+p}, s{44+p}, 7")
    def S(dst,x):
        a(f"s_add_u32 {dst}, {x}, s40"); a(f"s_sub_u32 s3, {dst}, 9"); a(f"s_cmp_ge_u32 {dst}, 9"); a(f"s_cselect_b32 {dst}, s3, {dst}")
    for p in range(9): a(f"s_mul_i32 s{44+p}, s{44+p}, {64*9216}")
    S("s65",8); a("s_lshl_b32 s68, s65, 7"); a(f"s_mul_i32 s3, s38, {16*9216}"); a("s_add_u32 s65, s68, s3")
    a("s_lshl_b32 s69, s38, 1"); S("s63","s69"); a("s_add_u32 s69, s69, 1"); S("s64","s69")
    a("s_lshl_b32 s63, s63, 7"); a("s_lshl_b32 s64, s64, 7"); a("s_mov_b32 s66, s63"); a("s_mov_b32 s67, s64")
    a("s_mul_i32 s3, s37, 589824"); a("s_mul_i32 s43, s36, 9216"); a("s_add_u32 s43, s43, s3")
    a("s_lshl_b32 s69, s63, 3"); a("s_add_u32 s69, s69, s43"); a("s_lshl_b32 s70, s64, 3"); a("s_add_u32 s70, s70, s43")
    a("s_lshl_b32 s71, s68, 3"); a("s_add_u32 s71, s71, s43"); a("s_lshr_b32 s3, s38, 1"); a("s_lshl_b32 s3, s3, 9"); a("s_add_u32 s71, s71, s3")
    a("s_and_b32 s3, s38, 1"); a("s_mul_i32 s3, s3, 294912"); a("s_add_u32 s71, s71, s3")
    a("s_mov_b32 s97, s68"); a(f"s_mul_i32 s3, s38, {16*1152}"); a("s_add_u32 s68, s68, s3")
    a("s_mov_b32 s100, 7456541"); a("s_movk_i32 s101, 576")
    a("v_lshrrev_b32 v40, 3, v1"); a("v_bfe_u32 v41, v1, 4, 1"); a("v_lshlrev_b32 v41, 2, v41"); a("v_xor_b32 v41, v41, v1"); a("v_and_b32 v41, 7, v41"); a("v_lshlrev_b32 v41, 4, v41")
    a("v_mul_u32_u24 v4, 9216, v40"); a("v_add_u32 v4, v4, v41"); a(f"v_add_u32 v5, {8*9216-1024}, v4")
    a("v_mul_u32_u24 v6, 1152, v40"); a("v_add_u32 v6, v6, v41"); a(f"v_add_u32 v7, {8*1152-1024}, v6")
    a("v_add_u32 v13, 32768, v12"); a(f"v_add_u32 v28, {TRIG}, v12")
    a("v_bfe_u32 v40, v1, 2, 2"); a("v_lshlrev_b32 v41, 7, v40"); a("v_lshrrev_b32 v40, 1, v40"); a("v_lshl_add_u32 v41, v40, 6, v41")
    a("v_bfe_u32 v40, v1, 4, 1"); a("v_lshl_add_u32 v41, v40, 5, v41"); a("v_add_u32 v41, s41, v41")
    a("v_and_b32 v42, 3, v1"); a("v_lshl_add_u32 v42, v42, 3, v41")
    a("v_and_b32 v43, 1, v1"); a("v_lshl_add_u32 v41, v43, 4, v41"); a("v_bfe_u32 v43, v1, 1, 1"); a("v_lshl_add_u32 v41, v43, 3, v41")
    a("v_lshrrev_b32 v40, 5, v1")
    a("v_lshl_add_u32 v8, v40, 10, v42"); a("v_xor_b32 v9, 64, v8"); a("v_lshl_add_u32 v10, v40, 9, v41"); a("v_xor_b32 v11, 64, v10")
    a("s_lshl_b32 s3, s38, 13"); a("s_add_u32 s3, s3, 8192"); a("v_add_u32 v14, s3, v12")
    a("s_lshr_b32 s3, s38, 1"); a("s_lshl_b32 s3, s3, 12"); a("s_and_b32 s43, s38, 1"); a("s_lshl_b32 s43, s43, 10"); a("s_add_u32 s3, s3, s43"); a("v_add_u32 v15, s3, v12")
    for k in range(1,4):
        a(f"s_add_u32 s3, s38, {k}"); a("s_and_b32 s3, s3, 3"); a("s_mul_i32 s3, s3, 12288"); a(f"s_add_u32 s3, s3, {PX+(k-1)*4096}"); a(f"v_add_u32 v{15+k}, s3, v12")
    a("s_mul_i32 s96, s38, 12288"); a(f"s_add_u32 s96, s96, {PX}"); a("v_add_u32 v19, s96, v12")
    XA=96
    a("v_bfe_u32 v41, v1, 1, 3"); a("v_xor_b32 v41, v41, v40"); a("v_and_b32 v42, 31, v1"); a("v_lshlrev_b32 v42, 7, v42")
    for k in range(4):
        a(f"v_xor_b32 v43, {2*k}, v41"); a(f"v_lshl_add_u32 v{XA+k}, v43, 4, v42"); a(f"v_add_u32 v{XA+4+k}, 0x10000, v{XA+k}")
    a("v_bfe_u32 v41, v1, 3, 2"); a("v_mul_u32_u24 v30, 73728, v41"); a("v_and_b32 v41, 7, v1"); a("v_lshl_add_u32 v30, v41, 5, v30"); a("v_lshl_add_u32 v30, v40, 4, v30"); a("v_add_u32 v29, 294912, v30")
    a("v_lshrrev_b32 v41, 2, v1"); a("v_lshlrev_b32 v26, 7, v41"); a("v_and_b32 v41, 1, v1"); a("v_lshl_add_u32 v26, v41, 4, v26"); a("v_bfe_u32 v41, v1, 1, 1"); a("v_lshl_add_u32 v26, v41, 3, v26"); a("v_add_u32 v26, s96, v26")
    a("v_and_b32 v41, 15, v1"); a("v_mul_u32_u24 v27, 73728, v41"); a("v_lshrrev_b32 v41, 4, v1"); a("v_lshl_add_u32 v27, v41, 4, v27")
    a("v_and_b32 v22, 19, v1"); a("v_bfe_u32 v41, v1, 2, 1"); a("v_lshl_add_u32 v22, v41, 3, v22"); a("v_bfe_u32 v41, v1, 3, 1"); a("v_lshl_add_u32 v22, v41, 2, v22")
    a("v_cvt_f32_u32 v23, v40"); a("v_mul_f32 v23, 0.25, v23"); a("v_and_b32 v24, v40, v1"); a("v_lshlrev_b32 v24, 31, v24"); a("v_or_b32 v24, 0.5, v24")
    def xread(t,mt):
        if t<32: a(f"ds_read_b128 {XB(t,mt)}, v{XA+t%4} offset:{(t//4)*8192+mt*4096}",('B',t,mt))
        else: a(f"ds_read_b128 {XB(t,mt)}, v{XA+4+t%4} offset:{mt*4096}",('B',t,mt))
    def wloads():
        def g0(a):
            a("v_and_b32 v104, 31, v1"); a("v_lshlrev_b32 v104, 6, v104"); a("v_add_u32 v104, s74, v104"); a("v_sub_u32 v105, 2048, v104"); a("v_and_b32 v105, 2047, v105")
            a("v_mul_u32_u24 v104, 578, v104"); a("v_mul_u32_u24 v105, 578, v105")
            for k,(vo,sr,o) in enumerate(((104,20,0),(104,24,0),(105,20,0),(105,24,0),(104,20,576),(104,24,576),(105,20,576),(105,24,576))):
                a(f"buffer_load_ushort v{128+k}, v{vo}, s[{sr}:{sr+3}], 0 offen offset:{o}")
        put(a,cond("g0l",["s_sub_u32 s3, s30, 1","s_or_b32 s3, s3, s75"],g0,"s_cbranch_scc1"))
        a("v_lshrrev_b32 v104, 4, v1"); a("v_lshlrev_b32 v104, 8, v104"); a("s_sub_u32 s3, 832, s74"); a("v_sub_u32 v105, s3, v104"); a("v_add_u32 v104, s74, v104")
        a("v_mul_u32_u24 v104, 578, v104"); a("v_mul_u32_u24 v105, 578, v105"); a("v_and_b32 v106, 15, v1"); a("s_lshl_b32 s3, s75, 4"); a("v_add_u32 v106, s3, v106")
        a("v_lshl_add_u32 v104, v106, 1, v104"); a("v_lshl_add_u32 v105, v106, 1, v105")
        for e,r in enumerate([0,1,2,3,16,17,18,19]):
            a(f"s_mov_b32 s3, {r*36992}")
            a(f"buffer_load_ushort v{WP[e]}, v104, s[20:23], s3 offen",'W'); a(f"buffer_load_ushort v{144+e}, v104, s[24:27], s3 offen",'W')
            a(f"buffer_load_ushort v{W2P[7-e]}, v105, s[20:23], s3 offen",'W'); a(f"buffer_load_ushort v{152+7-e}, v105, s[24:27], s3 offen",'W')
    def xloop(stepfn,pre=None):
        n=0
        for p in range(10):
            if p<9:
                a.wait(v=('x',p)); a("s_barrier")
                if p==0:
                    def at(a):
                        a("s_and_b32 s3, s2, 7"); a("s_lshl_b32 s3, s3, 5"); a("v_mov_b32 v104, s3"); a("v_mov_b32 v105, 1"); a("s_mov_b64 exec, 1")
                        a("global_atomic_add v104, v105, s[72:73] sc1"); a("s_mov_b64 exec, -1")
                    put(a,cond("at",["s_cmp_eq_u32 s38, 0"],at))
                for t in range(4*p,4*p+4): xread(t,0); xread(t,1)
                if pre: pre(p)
                if p==WPOS: wloads()
                for _ in range(RP[p]):
                    for x in dma_items(n//2,n%2): put(a,x)
                    n+=1
            if p>0:
                for t in range(4*p-4,4*p): stepfn(t)
        assert n==2*D
    a("s_cmp_eq_u32 s29, 0"); a("s_cbranch_scc1 Lkf_notask")
    st0=a.fork()
    YA=160; HB=192
    a("v_and_b32 v57, 15, v1"); a("s_lshl_b32 s3, s28, 4"); a("v_add_u32 v57, s3, v57")
    a("v_bfe_u32 v59, v1, 4, 1"); a("v_cvt_f32_u32 v58, v59"); a("v_mul_f32 v58, 0.25, v58")
    a("v_lshl_add_u32 v59, v57, 1, v59"); a("v_cmp_eq_u32 vcc, 1, v59"); a("v_mov_b32 v59, 288"); a("v_cndmask_b32 v57, v57, v59, vcc")
    a("v_mov_b32 v59, 0"); a("v_cndmask_b32 v58, v58, v59, vcc")
    a("s_lshl_b32 s3, s39, 6"); a("v_lshrrev_b32 v59, 5, v1"); a("v_lshlrev_b32 v59, 3, v59"); a("v_add_u32 v59, s3, v59")
    for j in range(8):
        L=[]
        for (dst,o,n,t) in ((40+j,j,68,69),(48+j,j+560,70,71)):
            L.append([f"v_add_u32 v{n}, {o}, v59",f"v_mul_u32_u24 v{n}, v{n}, v57"]+cos_mod(a,dst,n,t,58))
        for x,y in zip(*L): a(x); a(y)
    a("v_lshlrev_b32 v68, 4, v57")
    for x in cos_mod(a,56,68,69): a(x)
    a("v_add_f32 v56, v56, v56")
    a("v_and_b32 v71, 31, v1"); a("v_cvt_f32_u32 v68, v71"); a(f"v_mul_f32 v68, {f2u(1/64)}, v68")
    a("v_lshrrev_b32 v71, 5, v1"); a("v_lshlrev_b32 v71, 7, v71"); a("v_add_u32 v71, s37, v71"); a("v_cvt_f32_u32 v71, v71"); a(f"v_mul_f32 v71, {f2u(1/32)}, v71"); a("v_mul_f32 v69, v71, v68")
    for s in range(4):
        for jj in range(0,8,2):
            for e in range(2): a(f"v_fmamk_f32 v{60+e}, v68, {f2u(float(16*s+8*((jj+e)//4)+(jj+e)%4))}, v69")
            for e in range(2): a(f"v_cos_f32 v{62+e}, v{60+e}"); a(f"v_sin_f32 v{64+e}, v{60+e}")
            a(f"v_cvt_pk_bf16_f32 v{HB+8*s+jj//2}, v62, v63"); a(f"v_cvt_pk_bf16_f32 v{HB+4+8*s+jj//2}, v64, v65")
    def stepT(t):
        cur,prv=(40,48) if t%2==0 else (48,40); fb=60+4*(t%2)
        for j in range(4): a(f"v_cvt_pk_bf16_f32 v{fb+j}, v{cur+2*j}, v{cur+2*j+1}")
        a.wait(l=[('B',t,0),('B',t,1)])
        a(f"v_mfma_f32_32x32x16_bf16 {vr(YA,16)}, {XB(t,0)}, {vr(fb,4)}, {vr(YA,16) if t else 0}")
        if t<35:
            for j in range(4): a(f"v_fma_f32 v{prv+j}, v56, v{cur+j}, -v{prv+j}")
        a(f"v_mfma_f32_32x32x16_bf16 {vr(YA+16,16)}, {XB(t,1)}, {vr(fb,4)}, {vr(YA+16,16) if t else 0}")
        if t<35:
            for j in range(4,8): a(f"v_fma_f32 v{prv+j}, v56, v{cur+j}, -v{prv+j}")
    xloop(stepT)
    stamp(a,1,dbg)
    a("v_and_b32 v68, 1, v1"); a("v_cvt_f32_u32 v68, v68"); a(f"v_mul_f32 v68, {f2u(-0.25)}, v68"); a("v_cvt_f32_u32 v69, s37"); a(f"v_fmamk_f32 v68, v69, {f2u(1/64)}, v68"); a("v_cos_f32 v68, v68")
    a("v_and_b32 v70, 31, v1"); a("v_mul_u32_u24 v70, 73728, v70"); a("v_lshrrev_b32 v69, 5, v1"); a("v_lshl_add_u32 v70, v69, 4, v70")
    a("v_cvt_pk_bf16_f32 v64, v68, -v68")
    a("v_and_b32 v71, 1, v1"); a("v_lshlrev_b32 v71, 6, v71"); a("v_lshl_add_u32 v71, v69, 4, v71"); a(f"v_add_u32 v71, {32*73728}, v71")
    for k in range(1,4): a(f"v_mov_b32 v{64+k}, v64")
    a("s_lshl_b32 s3, s28, 5"); a("s_add_u32 s3, s3, s37"); a("s_lshl_b32 s3, s3, 7"); a(f"s_add_u32 s3, s3, {WS_R}")
    for k in range(16): a(f"v_cvt_pk_bf16_f32 v{40+k}, v{YA+2*k}, v{YA+2*k+1}")
    for s in range(4):
        for nt in range(3):
            d=vr(96+16*nt if nt<2 else YA,16)
            a(f"v_mfma_f32_32x32x16_bf16 {d}, {vr(40+4*s,4)}, {vr(HB+8*s+4*nt,4) if nt<2 else 'v[64:67]'}, {d if s else 0}")
    for nt in range(3):
        if nt==2: a("s_mov_b32 exec_lo, 3"); a("s_mov_b32 exec_hi, 3")
        for qh in range(2):
            b=(96+16*nt if nt<2 else YA)+8*qh; u=176+4*(2*nt+qh)
            for k in range(4): a(f"v_cvt_pk_bf16_f32 v{u+k}, v{b+2*k}, v{b+2*k+1}")
            a(f"buffer_store_dwordx4 {vr(u,4)}, v{70 if nt<2 else 71}, s[4:7], s3 offen offset:{(nt%2)*64+qh*32}{SC}",'R')
    a("s_mov_b64 exec, -1")
    a("s_branch Lkf_join0")
    e1=a.fork(); a.restore(st0)
    a("Lkf_notask:")
    a("s_cmp_lg_u32 s38, 3"); a("s_cbranch_scc1 Lkf_pn")
    stn=a.fork()
    a("v_and_b32 v40, 15, v1"); a("v_cvt_f32_u32 v40, v40"); a(f"v_mul_f32 v40, {f2u(1/32)}, v40"); a("v_add_f32 v41, 0.5, v40")
    a("v_lshrrev_b32 v42, 4, v1"); a("v_lshlrev_b32 v42, 2, v42"); a("v_cvt_f32_u32 v42, v42")
    for jj in range(0,8,2):
        for e in range(2): a(f"v_add_f32 v{44+e}, {f2u(float(16*((jj+e)//4)+(jj+e)%4))}, v42")
        for mt in range(2):
            for e in range(2): a(f"v_mul_f32 v{46+e}, v{44+e}, v{40+mt}")
            for e in range(2): a(f"v_cos_f32 v{48+e}, v{46+e}"); a(f"v_sin_f32 v{50+e}, v{46+e}")
            a(f"v_cvt_pk_bf16_f32 v{192+4*mt+jj//2}, v48, v49"); a(f"v_cvt_pk_bf16_f32 v{200+4*mt+jj//2}, v50, v51"); a(f"v_cvt_pk_bf16_f32 v{208+4*mt+jj//2}, -v50, -v51")
    for k in range(6): a(f"ds_write_b128 v28, {vr(192+4*k,4)} offset:{k*1024}")
    a("v_lshrrev_b32 v40, 5, v1"); a("v_lshlrev_b32 v40, 4, v40"); a(f"s_add_u32 s3, s41, {9*2048}"); a("v_add_u32 v40, s3, v40")
    def preG(p):
        a(f"v_add_u32 v41, s{54+p}, v40")
        for k in range(4): a(f"ds_read_b128 {vr(44+16*(p%2)+4*k,4)}, v41 offset:{32*k}",('gw',4*p+k))
    def stepG(t):
        a.wait(l=[('B',t,0),('B',t,1),('gw',t)])
        for mt in range(2): a(f"v_mfma_f32_32x32x16_bf16 {vr(YA+16*mt,16)}, {vr(44+16*((t//4)%2)+4*(t%4),4)}, {XB(t,mt)}, {vr(YA+16*mt,16) if t else 0}")
    xloop(stepG,preG)
    stamp(a,1,dbg)
    a("v_and_b32 v44, 31, v1"); a("v_lshlrev_b32 v44, 2, v44"); a(f"v_add_u32 v44, {GATE}, v44"); a(f"v_mov_b32 v45, {f2u(1e30)}")
    for mt in range(2):
        z=YA+16*mt
        a(f"v_mul_f32 v40, {f2u(1.4426950408889634)}, v{z}"); a("v_exp_f32 v41, v40"); a("v_exp_f32 v42, -v40"); a("v_add_f32 v41, 1.0, v41"); a("v_add_f32 v42, 1.0, v42")
        a("v_min_f32 v41, v41, v45"); a("v_rcp_f32 v42, v42"); a(f"v_mul_f32 v42, {f2u(2.0/(2048*576))}, v42")
        a(f"ds_write_b32 v44, v41 offset:{128*mt}"); a(f"ds_write_b32 v44, v42 offset:{256+128*mt}")
    a("s_branch Lkf_join1")
    e2=a.fork(); a.restore(stn)
    a("Lkf_pn:")
    xloop(lambda t: None)
    stamp(a,1,dbg)
    e3=a.fork()
    a("Lkf_join1:"); a.join([(e2[0],e2[1],[],e2[3]),(e3[0],e3[1],[],e3[3])])
    a(f"s_mov_b32 s3, {OOB}")
    for k in range(6): a(f"buffer_store_dword v12, v12, s[4:7], s3 offen",'R')
    a("s_waitcnt lgkmcnt(0)")
    e4=a.fork()
    a("Lkf_join0:")
    a.join([(e1[0],e1[1],[],e1[3]),e4])
    for cb in range(9):
        x = 8 if cb==0 else (2*(cb-1) if cb<=4 else 2*(cb-5)+1)
        S(f"s{54+cb}",x); a(f"s_mul_i32 s{54+cb}, s{54+cb}, {64*1152}")
    gen_main(a,dbg,fin)
    a("Lkf_end:"); a("s_endpgm")
    for l in TAIL: a.raw(l)
    a("Lkf_last:"); a("s_endpgm")
def variants(a,fn,name):
    for w in range(1,4):
        a(f"s_cmp_eq_u32 s38, {w}"); a(f"s_cbranch_scc1 L{name}_{w}")
    st=a.fork(); ends=[]
    for w in range(4):
        a.restore(st)
        if w: a(f"L{name}_{w}:")
        fn(w)
        if w<3: a(f"s_branch L{name}_j")
        ends.append(a.fork())
    a(f"L{name}_j:"); a.join(ends)
B0=["s_sub_u32 s3, s30, 1","s_or_b32 s3, s3, s75"]
def q_reduce():
    w1=[(f"ds_write_b128 v{15+k}, {vr(S1+16*k+4*c,4)} offset:{c*1024}",'pw') for k in range(1,4) for c in range(4)]
    w2=[('wait','pw',None),('bar',)]+[(f"ds_read_b128 {vr(S1+16+4*c,4)}, v19 offset:{c*1024}",('pr',c)) for c in range(12)]
    w3=[]
    for k in range(3):
        w3.append(('wait',('pr',4*k+3),None))
        w3+=[f"v_add_f32 v{S1+r}, v{S1+r}, v{S1+16+16*k+r}" for r in range(16)]
    return w1,w2,w3
def m_fwd():
    TC,TS,TN=160,168,176; Q=184; SS=[200,208,216,40]
    it=[(f"ds_read_b128 {vr(160+4*k,4)}, v28 offset:{k*1024}",'mt') for k in range(6)]
    it.append(('wait',None,'Rt'))
    for k in range(4):
        it.append((f"ds_read_b64_tr_b16 {vr(Q+4*k,2)}, v26 offset:{32*k}",'mq')); it.append((f"ds_read_b64_tr_b16 {vr(Q+4*k+2,2)}, v26 offset:{32*k+2048}",'mq'))
    it.append(('wait','mq',None))
    QA,QB,QC,QD=Q,Q+4,Q+8,Q+12
    cmb=((QA,QC,TN),(QD,QB,TS),(QB,QD,TN),(QC,QA,TS))
    for mt in range(2):
        for k,(x,y,T) in enumerate(cmb): it.append(f"v_mfma_f32_16x16x32_bf16 {vr(SS[k]+4*mt,4)}, {vr(TC+4*mt,4)}, {vr(x,4)}, 0")
        for k,(x,y,T) in enumerate(cmb): it.append(f"v_mfma_f32_16x16x32_bf16 {vr(SS[k]+4*mt,4)}, {vr(T+4*mt,4)}, {vr(y,4)}, {vr(SS[k]+4*mt,4)}")
    it.append(('grp',["v_lshrrev_b32 v64, 4, v1","v_add_u32 v64, s74, v64","v_cmp_eq_u32 vcc, 0, v64",f"v_cndmask_b32 v{W2P[0]}, v{W2P[0]}, v{WP[0]}, vcc"]))
    XR,XR2,XI,XI2=200,48,56,216
    for e in range(8):
        it+=[f"v_sub_f32 v{XR2+e}, v{SS[0]+e}, v{SS[1]+e}",f"v_add_f32 v{XR+e}, v{SS[0]+e}, v{SS[1]+e}",f"v_sub_f32 v{XI+e}, v{SS[2]+e}, v{SS[3]+e}",f"v_add_f32 v{XI2+e}, v{SS[2]+e}, v{SS[3]+e}"]
    ARR=(XR,XI,XR2,XI2)
    def sp1(a):
        a("v_lshrrev_b32 v64, 4, v1"); a("v_lshlrev_b32 v64, 4, v64"); a("v_add_u32 v64, s96, v64")
        a("v_and_b32 v65, 31, v1"); a("v_lshlrev_b32 v65, 2, v65"); a("v_add_u32 v65, s96, v65")
        a("s_mov_b32 exec_lo, 0x10001"); a("s_mov_b32 exec_hi, 0x10001")
        for k,r in enumerate(ARR):
            for h in range(2): a(f"ds_write_b128 v64, {vr(r+4*h,4)} offset:{128*k+64*h}")
        a("s_mov_b64 exec, -1"); a("s_waitcnt lgkmcnt(0)")
        for k in range(4): a(f"ds_read_b32 v{184+k}, v65 offset:{128*k}")
        a(f"ds_read_b128 v[188:191], v28 offset:{G0-TRIG}"); a("s_waitcnt lgkmcnt(0)")
        xr,xi,xr2,xi2,g1r,g1i,g2r,g2i=range(184,192)
        for d,L in ((192,((xr,g1r,1),(xi,g1i,-1),(xr2,g2r,1),(xi2,g2i,1))),(193,((xr,g1i,1),(xi,g1r,1),(xr2,g2i,1),(xi2,g2r,-1))),
                    (194,((xr2,g1r,1),(xi2,g1i,1),(xr,g2r,1),(xi,g2i,-1))),(195,((xi2,g1r,1),(xr2,g1i,-1),(xr,g2i,-1),(xi,g2r,-1)))):
            for n,(p,q,sg) in enumerate(L):
                if n==0: a(f"v_mul_f32 v{d}, v{p}, v{q}")
                else: a(f"v_fma_f32 v{d}, {'-' if sg<0 else ''}v{p}, v{q}, v{d}")
        for k in range(4): a(f"ds_write_b32 v65, v{192+k} offset:{128*k}")
        a("s_waitcnt lgkmcnt(0)")
    it.append(cond("sp1",B0,sp1,"s_cbranch_scc1"))
    for e in range(8):
        for (w,xr,xi,t) in ((WP[e],XR+e,XI+e,64+(e%2)*4),(W2P[e],XR2+e,XI2+e,184+(e%2)*4)):
            it+=[f"v_lshlrev_b32 v{t}, 16, v{w}",f"v_and_b32 v{t+1}, 0xffff0000, v{w}"]
        for (w,xr,xi,t) in ((WP[e],XR+e,XI+e,64+(e%2)*4),(W2P[e],XR2+e,XI2+e,184+(e%2)*4)):
            it+=[f"v_mul_f32 v{t+2}, v{xr}, v{t+1}",f"v_mul_f32 v{xr}, v{xr}, v{t}",f"v_fma_f32 v{xr}, -v{xi}, v{t+1}, v{xr}",f"v_fma_f32 v{xi}, v{xi}, v{t}, v{t+2}"]
    def sp2(a):
        a("v_lshrrev_b32 v64, 4, v1"); a("v_lshlrev_b32 v64, 4, v64"); a("v_add_u32 v64, s96, v64")
        a("s_mov_b32 exec_lo, 0x10001"); a("s_mov_b32 exec_hi, 0x10001")
        for k,r in enumerate(ARR):
            for h in range(2): a(f"ds_read_b128 {vr(r+4*h,4)}, v64 offset:{128*k+64*h}")
        a("s_waitcnt lgkmcnt(0)"); a("s_mov_b64 exec, -1")
    it.append(cond("sp2",B0,sp2,"s_cbranch_scc1"))
    PR,PI,PR2,PI2=XR,XI,XR2,XI2; DE,BE=208,40
    for e in range(0,8,2):
        for q in range(2): it+=[f"v_sub_f32 v{DE+e+q}, v{PR+e+q}, v{PR2+e+q}",f"v_add_f32 v{PR+e+q}, v{PR+e+q}, v{PR2+e+q}",f"v_sub_f32 v{BE+e+q}, v{PI+e+q}, v{PI2+e+q}",f"v_add_f32 v{PI+e+q}, v{PI+e+q}, v{PI2+e+q}"]
        for d,s in ((32,PR),(36,BE),(88,PI),(92,DE)): it.append(f"v_cvt_pk_bf16_f32 v{d+e//2}, v{s+e}, v{s+e+1}")
    return it
def m_inv():
    pa,pb,pg,pd=32,36,88,92; O=96
    it=[(f"ds_read_b128 a[{4*k}:{4*k+3}], v28 offset:{k*1024}",'mt') for k in range(6)]+[('wait','mt',None)]
    for nt in range(2):
        UC,US,UN=f"a[{4*nt}:{4*nt+3}]",f"a[{8+4*nt}:{11+4*nt}]",f"a[{16+4*nt}:{19+4*nt}]"
        cmb=((pa,pb,UN),(pg,pd,US),(pb,pa,US),(pd,pg,UN))
        for k,(x,y,T) in enumerate(cmb): it.append(f"v_mfma_f32_16x16x32_bf16 {vr(O+16*nt+4*k,4)}, {vr(x,4)}, {UC}, 0")
        for k,(x,y,T) in enumerate(cmb): it.append(f"v_mfma_f32_16x16x32_bf16 {vr(O+16*nt+4*k,4)}, {vr(y,4)}, {T}, {vr(O+16*nt+4*k,4)}")
    def k32(a):
        a("v_and_b32 v64, 15, v1"); a("v_cvt_f32_u32 v64, v64"); a(f"v_mul_f32 v64, {f2u(1/64)}, v64"); a("v_add_f32 v65, 0.25, v64")
        for nt in range(2):
            a(f"v_cos_f32 v66, v{64+nt}"); a(f"v_sin_f32 v67, v{64+nt}")
            for r in range(8): a(f"v_mul_f32 v{O+16*nt+r}, v66, v{O+16*nt+r}")
            for r in range(4): a(f"v_fma_f32 v{O+16*nt+r}, -v67, v{O+16*nt+8+r}, v{O+16*nt+r}"); a(f"v_fma_f32 v{O+16*nt+4+r}, v67, v{O+16*nt+12+r}, v{O+16*nt+4+r}")
    it.append(cond("k32",["s_cmp_eq_u32 s74, 32"],k32))
    for nt in range(2):
        b=O+16*nt
        for h,u in ((0,32+4*nt),(1,88+4*nt)):
            for c in range(4):
                n='-' if (h==1 and c>=2) else ''
                it.append(f"v_cvt_pk_bf16_f32 v{u+c}, {n}v{b+8*h+2*c}, {n}v{b+8*h+2*c+1}")
            it.append((f"buffer_store_dwordx4 {vr(u,4)}, v27, s[4:7], s{8+2*h+nt} offen offset:{64*h}{SC}",'E'))
    return it
def gen_main(a,dbg,fin):
    T0=lambda blk,mt:S0+16*(2*blk+mt); T1=lambda blk,mt:S1+16*(2*blk+mt)
    stamp(a,2,dbg)
    for u in range(P): aread(a,u)
    def g0c(a):
        for k in range(8): a(f"v_lshlrev_b32 v{128+k}, 16, v{128+k}")
        a("v_add_f32 v136, v128, v130"); a("v_sub_f32 v137, v129, v131"); a("v_add_f32 v138, v132, v134"); a("v_sub_f32 v139, v133, v135")
        a("v_add_f32 v140, v136, v138"); a("v_add_f32 v141, v137, v139"); a("v_sub_f32 v142, v136, v138"); a("v_sub_f32 v143, v137, v139")
        for r in range(140,144): a(f"v_mul_f32 v{r}, 0.25, v{r}")
        a(f"ds_write_b128 v28, v[140:143] offset:{G0-TRIG}")
    wpk=[('wait',None,'W')]+[f"v_lshl_or_b32 v{WP[e]}, v{144+e}, 16, v{WP[e]}" for e in range(8)]+[f"v_lshl_or_b32 v{W2P[e]}, v{152+e}, 16, v{W2P[e]}" for e in range(8)]+[cond("g0c",B0,g0c,"s_cbranch_scc1")]
    variants(a,lambda w: job(a,0,9,lambda blk,mt: S1+16*((2*blk+mt-w)%4),lambda s:4*s+w,[(7.5,9,wpk)]),"q1")
    stamp(a,3,dbg)
    a("s_mov_b32 s20, 0x3f80"); a("s_mov_b32 s21, 0x3f800000")
    w1,w2,w3=q_reduce()
    gate=["v_and_b32 v64, 31, v1","v_lshlrev_b32 v64, 2, v64",f"v_add_u32 v64, {GATE}, v64","s_and_b32 s3, s38, 1","s_lshl_b32 s3, s3, 7","v_add_u32 v65, s3, v64",
          ("ds_read_b32 v3, v64",'gt'),("ds_read_b32 v31, v64 offset:128",'gt'),("ds_read_b32 v2, v65",'gt')]
    siluq=silu_items(S1,16,48,2)+[(f"ds_write_b128 v15, v[48:51]",'hq'),(f"ds_write_b128 v15, v[52:55] offset:2048",'hq')]
    pr_l=[("global_load_dword v68, v66, s[72:73] sc1",'pR'),("buffer_load_dword v69, v67, s[4:7], s22 offen sc1",'pR')]
    pollR=["v_and_b32 v66, 7, v1","v_lshlrev_b32 v66, 5, v66","v_and_b32 v67, 31, v1","v_lshlrev_b32 v67, 2, v67","s_lshl_b32 s22, s75, 7",f"s_add_u32 s22, s22, {WS_FL}"]+pr_l
    chkR=[check("R",pr_l,["v_cmp_ne_u32 vcc, 32, v68","v_cmp_eq_u32 s[24:25], 0, v69","s_or_b64 vcc, vcc, s[24:25]"],'pR'),
          ('grp',["s_mov_b32 m0, s96"]+[(f"buffer_load_dwordx4 v12, s[4:7], s31 offen offset:{q*1024} sc1 lds",'Rt') for q in range(4)])]
    job(a,9,36,T0,lambda s:s,[(0.25,0.5,[('grp',[('wait',None,'R'),setflag(0)])]),(1,5,[('bar',)]+w1+gate),(6,10,w2),(10,14.5,w3),(11,12.5,pollR),(14.5,23.5,siluq),(16.75,17,chkR),
        (23.5,35.5,m_fwd()),(35.5,36,[('wait','hq',None),('bar',)])])
    stamp(a,4,dbg)
    job(a,45,36,T1,lambda s:s,[(0.75,32,silu_strip(S0,0,'hA')),(18,24,m_inv()),(31.5,31.75,[('grp',[('wait',None,'E'),setflag(1)])]),
        (33,35.5,[hread(t,mt) for t in range(3) for mt in range(2)]),(35.5,36,[('wait',('hA',3),None),('bar',)])])
    stamp(a,5,dbg)
    pe_l=[("buffer_load_dword v68, v66, s[4:7], s22 offen sc1",'pE'),("buffer_load_dword v69, v66, s[4:7], s23 offen sc1",'pE')]
    pollE=["v_min_u32 v66, 32, v1","v_lshlrev_b32 v66, 2, v66","s_lshr_b32 s24, s38, 1","s_lshl_b32 s3, s36, 1","s_add_u32 s24, s24, s3","s_add_u32 s25, s36, 12",
           ('grp',["s_and_b32 s3, s36, 6","s_cmp_eq_u32 s3, 4","s_cselect_b32 s25, s25, s24","s_cselect_b32 s26, 1, 0"]),
           "s_lshl_b32 s22, s24, 8",f"s_add_u32 s22, s22, {WS_FL+4096}","s_lshl_b32 s23, s25, 8",f"s_add_u32 s23, s23, {WS_FL+4096}"]+pe_l
    edma=[check("E",pe_l,["v_cmp_eq_u32 vcc, 0, v68","v_cmp_eq_u32 s[22:23], 0, v69","s_or_b64 vcc, vcc, s[22:23]"][:1]+["v_cmp_eq_u32 s[28:29], 0, v69","s_or_b64 vcc, vcc, s[28:29]"],'pE'),
          "s_mul_i32 s3, s37, 18","s_add_u32 s22, s24, s3","s_lshl_b32 s22, s22, 12",f"s_add_u32 s22, s22, {WS_E}","s_add_u32 s23, s25, s3","s_lshl_b32 s23, s23, 12",f"s_add_u32 s23, s23, {WS_E}",
          "s_lshl_b32 s27, s38, 12","s_add_u32 s27, s27, 12288","s_and_b32 s28, s38, 1","s_lshl_b32 s28, s28, 12","s_add_u32 s28, s28, 28672"]
    edma2=[('grp',["s_mov_b32 m0, s27"]+[(f"buffer_load_dwordx4 v12, s[4:7], s22 offen offset:{q*1024} sc1 lds",'Et') for q in range(4)]),
           cond("ex",["s_cmp_eq_u32 s26, 1"],lambda a:[a("s_mov_b32 m0, s28")]+[a(f"buffer_load_dwordx4 v12, s[4:7], s23 offen offset:{q*1024} sc1 lds") for q in range(4)]),
           ("buffer_load_dword v69, v12, s[4:7], 0 offen",'Et')]
    hi=["v_and_b32 v64, 31, v1","s_and_b32 s3, s38, 1","s_lshl_b32 s3, s3, 5","v_add_u32 v64, s3, v64","v_lshlrev_b32 v65, 2, v64",f"v_add_u32 v65, {GATE+256}, v65",("ds_read_b32 v62, v65",'gm'),
        "v_lshlrev_b32 v64, 5, v64","v_add_u32 v64, s37, v64","v_cvt_f32_u32 v64, v64",f"v_mul_f32 v64, {f2u(1/2048)}, v64",f"v_mul_f32 v65, {f2u(16.0)}, v23","v_mul_f32 v65, v65, v64"]
    for s in range(4):
        for q in range(0,4,2):
            hi+=[f"v_fmamk_f32 v{56+e}, v64, {f2u(float(8*s+q+e))}, v65" for e in range(2)]
            for e in range(2): hi+=[f"v_cos_f32 v{58+2*e}, v{56+e}",f"v_sin_f32 v{59+2*e}, -v{56+e}"]
            hi+=[f"v_cvt_pk_bf16_f32 v{40+4*s+q+e}, v{58+2*e}, v{59+2*e}" for e in range(2)]
    hi+=[('grp',["v_lshlrev_b32 v56, 31, v1","v_or_b32 v56, 0x3f003f00, v56","v_cmp_gt_u32 vcc, 32, v1","v_cndmask_b32 v40, v40, v56, vcc"]),
         "v_lshrrev_b32 v63, 5, v1","v_lshlrev_b32 v63, 9, v63","v_bfe_u32 v56, v1, 2, 2","v_lshl_add_u32 v63, v56, 6, v63","v_bfe_u32 v56, v1, 4, 1","v_lshl_add_u32 v63, v56, 5, v63","v_and_b32 v56, 3, v1","v_lshl_add_u32 v63, v56, 3, v63"]
    UD,UA=S1+16,S1+32
    def unit(sb,slot_s):
        it=[f"v_add_u32 v57, {sb}, v63"]
        for s in range(4): it+=[(f"ds_read_b64_tr_b16 {vr(UA+4*s,2)}, v57 offset:{s*1024}",'ua'),(f"ds_read_b64_tr_b16 {vr(UA+4*s+2,2)}, v57 offset:{s*1024+256}",('ua',s))]
        for s in range(4): it+=[('wait',('ua',s),None),f"v_mfma_f32_32x32x16_bf16 {vr(UD,16)}, {vr(UA+4*s,4)}, {vr(40+4*s,4)}, {vr(UD,16) if s else 0}"]
        it+=slot_s
        it2=[f"v_mul_f32 v{UD+r}, v62, v{UD+r}" for r in range(16)]+[f"v_cvt_pk_bf16_f32 v{UD+r}, v{UD+2*r}, v{UD+2*r+1}" for r in range(8)]
        it2+=[(f"ds_write_b128 v56, {vr(UD,4)}",'uw'),(f"ds_write_b128 v56, {vr(UD+4,4)} offset:2048",'uw')]
        return it,it2
    u1,u1b=unit("s27",["s_lshr_b32 s3, s38, 1","s_lshl_b32 s3, s3, 12","s_and_b32 s53, s38, 1","s_lshl_b32 s53, s53, 10","s_add_u32 s3, s3, s53","v_add_u32 v56, s3, v12"])
    def u2(a):
        x,y=unit("s28",["s_lshl_b32 s3, s38, 10","s_add_u32 s3, s3, 8192","v_add_u32 v56, s3, v12"])
        a("s_waitcnt lgkmcnt(0)")
        for z in x+y: put(a,z)
        a("s_waitcnt lgkmcnt(0)")
    EXW=["s_lshr_b32 s3, s38, 1","s_sub_u32 s3, s26, s3","s_cmp_eq_u32 s3, 1"]
    J0=["s_cmp_eq_u32 s36, 0","s_cselect_b64 vcc, -1, 0"]
    gq=["s_lshl_b32 s43, s36, 2","s_add_u32 s43, s43, s38","s_lshl_b32 s43, s43, 3","s_add_u32 s43, s43, 574"]+gd_init("s97","s43")+gd_step(32,["s_cmp_eq_u32 s43, 574","s_cselect_b64 vcc, -1, 0"])
    def gqx(a):
        for z in ["s_lshl_b32 s43, s36, 1","s_add_u32 s43, s43, s38","s_lshl_b32 s43, s43, 3","s_add_u32 s43, s43, 766"]+gd_init("s97","s43")+gd_step(40): put(a,z)
    def gmain(scol): return ["s_lshl_b32 s43, s36, 5","s_add_u32 s43, s43, 574"]+gd_init(scol,"s43")+gd_step(GPK,J0)+uread(0,0)
    def ext(tile,scol,name):
        for e in range(4): ext_step(a,tile,GPK+8*(e%2),e,e%2,(uread(e+1,(e+1)%2)+gd_step(GPK+8*((e+1)%2))) if e<3 else [])
        def xt(a):
            for z in ["s_lshl_b32 s43, s36, 4","s_add_u32 s43, s43, 766"]+gd_init(scol,"s43")+uread(4,1)+gd_step(GPK): put(a,z)
            ext_step(a,tile,GPK,4,1,[]);
            for z in uread(5,0)+gd_step(GPK+8): put(a,z)
            ext_step(a,tile,GPK+8,5,0,[])
        put(a,cond(name,["s_cmp_eq_u32 s26, 1"],xt))
    def jit(s,blk):
        it=[]
        if s==17 and blk==0: it+=[('wait',('hB',3),None),('bar',)]
        if s+3<36: it.append(hread(s+3,blk))
        return it
    job(a,81,36,T0,lambda s:s,[(0.75,16.75,silu_strip(S1,32768,'hB')),(9,11,pollE),(16,17,edma),(17.75,18,edma2),(18.5,24,hi),(24,25,[('wait','gm','Et')]+gq[:8]),(25,27.5,u1+gq[8:40]),(27.5,30,gq[40:]),(28.5,31,u1b),
        (31,31.25,[cond("u2",EXW,u2,"s_cbranch_scc0"),cond("gqx",EXW,gqx,"s_cbranch_scc0")]),(31.5,35.75,gmain("s66")[:-2]),(34,34.25,[('wait',['uw',('B',35,1)],None),('bar',)]),(35.75,36,uread(0,0))],jit)
    ext(T0,"s66","xa")
    stamp(a,6,dbg)
    def q2(w):
        T=lambda blk,mt: S1+16*((2*blk+mt-w)%4)
        job(a,117,9,T,lambda s:4*s+w,[(0.75,8.5,store_strip(S0,"s69",'stA')),(8,8.5,uread(w,0))])
        ext_step(a,T,32,w,0,[])
        if w<2:
            def xq(a):
                for z in uread(4+w,1): put(a,z)
                ext_step(a,T,40,4+w,1,[])
            put(a,cond("xq",["s_cmp_eq_u32 s26, 1"],xq))
    variants(a,q2,"q2")
    stamp(a,7,dbg)
    w1,w2,w3=q_reduce()
    stq=[]
    for p in range(2):
        stq+=[f"v_cvt_pk_bf16_f32 v{88+4*p+c}, v{S1+8*p+2*c}, v{S1+8*p+2*c+1}" for c in range(4)]
        stq.append((f"buffer_store_dwordx4 {vr(88+4*p,4)}, v30, s[4:7], s71 offen offset:{p*256}{SC}",'stQ'))
    fa=["v_and_b32 v50, 7, v1","v_lshlrev_b32 v50, 2, v50","s_lshl_b32 s22, s37, 9","s_lshl_b32 s3, s38, 5","s_add_u32 s23, s22, s3",f"s_add_u32 s23, s23, {WS_FL+12288}",
        "s_lshl_b32 s3, s37, 3","s_add_u32 s3, s3, s36","s_mul_i32 s24, s3, 73728","s_lshl_b32 s3, s36, 8","s_add_u32 s3, s3, s37","s_mul_i32 s25, s3, 1152",
        "v_bfe_u32 v51, v1, 1, 3","v_mul_u32_u24 v51, 36864, v51","v_lshrrev_b32 v52, 4, v1","v_lshl_add_u32 v51, v52, 5, v51","v_and_b32 v52, 1, v1","v_lshl_add_u32 v51, v52, 4, v51"]
    pa_l=[("buffer_load_dword v53, v50, s[4:7], s23 offen sc1",'pA')]
    LA=S1+16
    chkA=[check("A",pa_l,["v_cmp_eq_u32 vcc, 0, v53","s_or_b64 vcc, vcc, vcc"],'pA'),"s_lshl_b32 s3, s66, 3","s_add_u32 s27, s24, s3"]+unit_loads(LA,12,"s27",'uA')
    sumA=unit_sum(LA,40,'uA')+["s_add_u32 s3, s25, s66",("buffer_store_dwordx4 v[40:43], v51, s[32:35], s3 offen",'o')]
    wins=[(0.25,3,w1),(4,7.5,w2),(5,5.25,[('grp',[('wait',None,'stA'),setflag(2)])]),(8,12.5,w3),(12.5,14,stq),(21,21.25,[('grp',[('wait',None,'stQ'),setflag(3)])]),(31.5,36,gmain("s67"))]
    if fin: wins+=[(9,12,fa+pa_l),(17,19,chkA),(24.5,31,sumA)]
    job(a,126,36,T0,lambda s:s,wins)
    ext(T0,"s67","xb")
    stamp(a,8,dbg)
    for x in store_strip(S0,"s70",'stB'): put(a,x)
    if fin:
        a("s_and_b32 s3, s38, 2"); a("s_lshr_b32 s43, s36, 2"); a("s_add_u32 s3, s3, s43"); a("s_lshl_b32 s3, s3, 5"); a("s_add_u32 s22, s22, s3"); a(f"s_add_u32 s22, s22, {WS_FL+12288+128}")
        pq_l=[("buffer_load_dword v53, v50, s[4:7], s22 offen sc1",'pQ')]
        put(a,pq_l[0])
        a("s_lshl_b32 s3, s97, 3"); a("s_add_u32 s27, s24, s3"); a("s_lshl_b32 s3, s38, 8"); a("s_add_u32 s27, s27, s3")
        a.wait(v='pQ'); put(a,setflag(4))
        put(a,check("Q",pq_l,["v_cmp_eq_u32 vcc, 0, v53","s_or_b64 vcc, vcc, vcc"],'pQ'))
        a("s_mov_b64 exec, 0xffff")
        for x in unit_loads(S1,12,"s27",'uQ'): put(a,x)
        a("s_mov_b64 exec, -1")
        a("s_add_u32 s23, s23, 256")
        pb_l=[("buffer_load_dword v53, v50, s[4:7], s23 offen sc1",'pB')]
        put(a,pb_l[0])
        for x in unit_sum(S1,40,'uQ'): put(a,x)
        a("s_add_u32 s3, s25, s97"); a("s_lshl_b32 s43, s38, 5"); a("s_add_u32 s3, s3, s43"); a("s_mov_b64 exec, 0xffff")
        a("buffer_store_dwordx4 v[40:43], v51, s[32:35], s3 offen",'o'); a("s_mov_b64 exec, -1")
        a("s_lshl_b32 s3, s67, 3"); a("s_add_u32 s27, s24, s3")
        put(a,check("B",pb_l,["v_cmp_eq_u32 vcc, 0, v53","s_or_b64 vcc, vcc, vcc"],'pB'))
        stamp(a,9,dbg)
        for x in unit_loads(S1+32,12,"s27",'uB'): put(a,x)
        for x in unit_sum(S1+32,56,'uB'): put(a,x)
        a("s_add_u32 s3, s25, s67"); a("buffer_store_dwordx4 v[56:59], v51, s[32:35], s3 offen",'o')
    if dbg:
        a("s_waitcnt vmcnt(0)"); a("s_and_b32 s5, s5, 0xffff")
        dump_stamps(a,dbg,0,4)
```

```python
import sys
from common import *
import kf
def build(dbg=0,cyc=0,**kw):
    CYC[0]=cyc
    a=Asm()
    hdr=open("cdna_kernels/"+NAME+".s.ref").read().split("\n")
    H=[l for l in hdr if l.startswith(";") and "@launch" not in l and "Override" not in l and "grid=ceil" not in l]
    K1=NAME+"_kernel"
    H+=[f"; @launch grid=(256,1,1) block=(256,1,1) lds={kf.LDS_TOTAL}"]
    for l in H: a.raw(l)
    a.raw('.amdgcn_target "amdgcn-amd-amdhsa--gfx950"'); a.raw(".text")
    kf.gen_kf(a,K1,dbg=dbg,**kw)
    a.raw('.section .rodata,"a"')
    for l in kdesc(K1,512,256): a.raw(l)
    return a
if __name__=="__main__":
    kw=dict(x.split("=") for x in sys.argv[2:])
    a=build(**{k:(int(v) if v.lstrip('-').isdigit() else (v if k=='PR' else eval(v))) for k,v in kw.items()})
    open(sys.argv[1],"w").write(a.text()); print("lines",len(a.L),"nops",a.nops)
```

```python
import re
TRANS = ("v_exp_f32","v_log_f32","v_rcp_f32","v_rsq_f32","v_sqrt_f32","v_sin_f32","v_cos_f32")
RE = re.compile(r'\b([vas])(\d+)\b|\b([vas])\[(\d+):(\d+)\]|\b(vcc|m0|exec|scc)\b')
def regs(tok):
    out=[]
    for m in RE.finditer(tok):
        if m.group(1): out.append(m.group(1)+m.group(2))
        elif m.group(3): out += [m.group(3)+str(i) for i in range(int(m.group(4)),int(m.group(5))+1)]
        else: out.append(m.group(6))
    return out
def split_ops(s):
    ops=[];d=0;c=""
    for ch in s:
        if ch=='[': d+=1
        if ch==']': d-=1
        if ch==',' and d==0: ops.append(c.strip()); c=""
        else: c+=ch
    if c.strip(): ops.append(c.strip())
    return ops
class Ins:
    def __init__(s, text):
        s.text=text
        p=text.split(None,1); s.op=p[0]; rest=p[1] if len(p)>1 else ""
        ops=split_ops(rest); s.ops=ops
        op=s.op
        s.mfma=op.startswith("v_mfma"); s.valu=op.startswith("v_") and not s.mfma
        s.salu=op.startswith("s_"); s.ds=op.startswith("ds_")
        s.vmem=op.startswith("buffer_") or op.startswith("global_")
        s.trans=any(op.startswith(t) for t in TRANS); s.dot=op.startswith("v_dot")
        s.dpp=("quad_perm" in text or "row_" in text); s.lds=s.vmem and re.search(r'\blds\b',text) is not None
        s.store=s.vmem and ("store" in op or "atomic" in op)
        s.w=[]; s.r=[]
        if s.mfma:
            s.w=regs(ops[0]); s.a=regs(ops[1])+regs(ops[2]); s.c=regs(ops[3]); s.r=s.a+s.c
            s.passes=8 if "32x32" in op else 4
        elif s.valu:
            s.w=regs(ops[0]);
            for o in ops[1:]: s.r+=regs(o)
            if op.startswith(("v_fmac","v_dot2c","v_writelane","v_permlane")) : s.r+=s.w
            if op.startswith("v_permlane") and "swap" in op: s.w+=regs(ops[1])
            if op.startswith("v_cndmask") and len(ops)==3: s.r.append("vcc")
            if "_co_" in op: s.w+=regs(ops[1])
        elif s.ds:
            if op.startswith("ds_read") or op.startswith("ds_bpermute") or op.startswith("ds_swizzle"):
                s.w=regs(ops[0])
                for o in ops[1:]: s.r+=regs(o)
            else:
                for o in ops: s.r+=regs(o)
        elif s.vmem:
            if s.lds or (s.store and "sc0" not in text.split() or "_store" in op):
                for o in ops: s.r+=regs(o)
                if s.lds: s.r.append("m0")
            else:
                s.w=regs(ops[0])
                for o in ops[1:]: s.r+=regs(o)
                if "d16" in op or s.store: s.r+=s.w
            s.data=regs(ops[0] if op.startswith("buffer") else (ops[1] if len(ops)>1 else "")) if s.store else []
        elif s.salu:
            if op.startswith(("s_cmp","s_waitcnt","s_barrier","s_nop","s_cbranch","s_branch","s_endpgm","s_setprio","s_setpc","s_sleep","s_bitcmp")):
                for o in ops: s.r+=regs(o)
            else:
                s.w=regs(ops[0])
                for o in ops[1:]: s.r+=regs(o)
                if "saveexec" in op: s.w.append("exec")
class Multi:
    def __init__(s,L): s.L=L
    def __eq__(s,o): return isinstance(o,Multi) and s.L==o.L
    def __hash__(s): return hash(tuple(map(repr,s.L)))
def qmin(qs):
    d={}
    for q in qs:
        seen={}
        for k,t in enumerate(q):
            for x in (t.L if isinstance(t,Multi) else [t]):
                if x is not None: seen[x]=len(q)-1-k
        for x,v in seen.items(): d[x]=min(d.get(x,v),v)
    if not d: return []
    n=max(d.values())+1; out=[[] for _ in range(n)]
    for x,v in d.items(): out[n-1-v].append(x)
    return [None if not L else (L[0] if len(L)==1 else Multi(L)) for L in out]
class Asm:
    def __init__(s):
        s.L=[]; s.t=0; s.hz={}
        s.lq=[]; s.vq=[]; s.nops=0
    def raw(s,x): s.L.append(x)
    def need(s,i):
        n=0
        def chk(kind,r,d):
            nonlocal n
            k=(kind,r)
            if k in s.hz:
                tp,extra=s.hz[k]
                dd=d(extra) if callable(d) else d
                n=max(n, dd-(s.t-tp-1))
        if i.mfma:
            for r in i.r: chk("valuw",r,2)
            for r in i.a: chk("mfmaw",r,lambda e: e[0]+4)
            for r in i.c: chk("mfmaw",r,lambda e: 0 if (e[1]==tuple(i.c) and e[0]==i.passes) else e[0]+2)
            for r in i.w:
                if r not in i.c: chk("mfmaw",r,lambda e: 0 if (e[1]==tuple(i.w) and e[0]==i.passes) else e[0]+2)
            for r in i.r: chk("dotw",r,3)
        if i.valu or i.vmem or i.ds:
            for r in i.r+i.w: chk("mfmaw",r,lambda e: e[0]+4)
        if i.valu:
            for r in i.w: chk("mfmac",r,lambda e: e-1)
            if not i.trans:
                for r in i.r: chk("transw",r,1)
            for r in i.r:
                if r[0]=='s' or r=="vcc": chk("valus",r,4 if i.op.startswith(("v_readlane","v_writelane")) else 2)
            if i.dpp or i.op.startswith("v_permlane"):
                for r in i.r: chk("valuw",r,2)
            if i.op.startswith(("v_readlane","v_readfirstlane")):
                for r in i.r: chk("valuw",r,1)
            for r in i.w: chk("stdata",r,2)
            for r in i.r+i.w: chk("dotw",r,lambda e: 0 if (e==i.op and r in i.w) else 3)
        if i.vmem or i.ds:
            for r in i.r:
                if r[0]=='s' or r=="vcc": chk("valus",r,5)
            for r in i.w: chk("stdata",r,1)
            for r in i.r: chk("dotw",r,3)
            for r in i.r: chk("transw",r,1)
        if i.lds: chk("m0w","m0",1)
        return n
    def __call__(s,text,tag=None):
        text=text.strip()
        if text.endswith(":") or text.startswith((".",";")):
            s.L.append(text); return
        i=Ins(text)
        n=s.need(i)
        while n>0:
            k=min(n,16); s.L.append(f"s_nop {k-1}"); s.t+=k; n-=k; s.nops+=1
        s.L.append(text)
        if i.mfma:
            for r in i.w: s.hz[("mfmaw",r)]=(s.t,(i.passes,tuple(i.w))); s.hz.pop(("valuw",r),None)
            for r in i.c: s.hz[("mfmac",r)]=(s.t,i.passes)
        elif i.valu:
            for r in i.w:
                if r[0] in "va" and r!="vcc":
                    s.hz[("valuw",r)]=(s.t,None)
                    if i.trans: s.hz[("transw",r)]=(s.t,None)
                    else: s.hz.pop(("transw",r),None)
                    if i.dot: s.hz[("dotw",r)]=(s.t,i.op)
                    else: s.hz.pop(("dotw",r),None)
                    s.hz.pop(("mfmaw",r),None)
                else: s.hz[("valus",r)]=(s.t,None)
        elif i.salu:
            for r in i.w:
                if r=="m0": s.hz[("m0w","m0")]=(s.t,None)
                s.hz.pop(("valus",r),None)
        if i.vmem and i.store and ("x4" in i.op or "x3" in i.op):
            for r in i.data: s.hz[("stdata",r)]=(s.t,None)
        if i.op=="s_nop": s.t+=int(i.ops[0])
        s.t+=1
        if i.ds: s.lq.append(tag)
        if i.vmem: s.vq.append(tag)
        if i.op=="s_waitcnt":
            m=re.search(r'lgkmcnt\((\d+)\)',text)
            if m: k=int(m.group(1)); s.lq=s.lq[len(s.lq)-k:] if k<len(s.lq) else s.lq
            if m and k==0: s.lq=[]
            m=re.search(r'vmcnt\((\d+)\)',text)
            if m: k=int(m.group(1)); s.vq=s.vq[len(s.vq)-k:] if k<len(s.vq) else s.vq
            if m and k==0: s.vq=[]
    def _cnt(s,q,tags,mx):
        if not isinstance(tags,(list,tuple,set)) or isinstance(tags,tuple): tags=[tags]
        idx=[k for k,t in enumerate(q) if (any(x in tags for x in t.L) if isinstance(t,Multi) else t in tags)]
        if not idx: return None
        return min(len(q)-1-max(idx),mx)
    def wait(s,l=None,v=None):
        a=s._cnt(s.lq,l,15) if l is not None else None
        b=s._cnt(s.vq,v,63) if v is not None else None
        p=[]
        if b is not None: p.append(f"vmcnt({b})")
        if a is not None: p.append(f"lgkmcnt({a})")
        if p: s("s_waitcnt "+" ".join(p))
    def fork(s): return (s.t,dict(s.hz),list(s.lq),list(s.vq))
    def restore(s,st): s.t,s.hz,s.lq,s.vq=st[0],dict(st[1]),list(st[2]),list(st[3])
    def join(s,states):
        hz={}
        for (t,h,lq,vq) in states:
            assert lq==states[0][2] and vq==states[0][3], "queue mismatch at join"
            for k,(tp,e) in h.items():
                age=t-tp
                if k not in hz or age<hz[k][0]: hz[k]=(age,e)
        s.t=10**6+s.t
        s.hz={k:(s.t-a,e) for k,(a,e) in hz.items()}
        s.lq=list(states[0][2]); s.vq=list(states[0][3])
    def joinm(s,states):
        lq=qmin([x[2] for x in states]); vq=qmin([x[3] for x in states])
        s.join([(x[0],x[1],lq,vq) for x in states])
    def reset(s): s.hz={}; s.lq=[]; s.vq=[]
    def text(s): return "\n".join(s.L)+"\n"
```

```python
from common import *
RING=73728; NSLOT=10; D=9; P=2
PX=24576
S0,S1=96,160
AB=72
TRIG=155648; G0=TRIG+6144; GATE=TRIG+7168; LDS_TOTAL=163840
WS_X=0; WS_R=0x1200000; WS_E=0x1480000; FS=4352; FR=0x1800000; FE=FR+0x14000; FF=FR+0x28000
OOB=0x4000000
SC=" sc1"
WP=[32+e for e in range(8)]; W2P=[88+e for e in range(8)]
def XB(t,mt):
    i=8*t+4*mt
    return f"a[{i}:{i+3}]" if i<256 else vr(224+i-256,4)
LOG2E=f2u(-1.4426950408889634)
def silu_items(base,n,packdst,c):
    it=[]
    for g in range(0,n,4):
        T=[40+(g//4%2)*4+k for k in range(4)]
        for k in range(4): it.append(f"v_mul_f32 v{T[k]}, {LOG2E}, v{base+g+k}")
        for k in range(4): it.append(f"v_exp_f32 v{T[k]}, v{T[k]}")
        for k in range(4): it.append(f"v_fma_f32 v{T[k]}, v{T[k]}, v{c}, v{c}")
        for k in range(4): it.append(f"v_rcp_f32 v{T[k]}, v{T[k]}")
        for k in range(4): it.append(f"v_mul_f32 v{base+g+k}, v{base+g+k}, v{T[k]}")
        it.append(f"v_cvt_pk_bf16_f32 v{packdst+g//2}, v{base+g}, v{base+g+1}")
        it.append(f"v_cvt_pk_bf16_f32 v{packdst+g//2+1}, v{base+g+2}, v{base+g+3}")
    return it
def silu_strip(S,imm0,tag):
    it=[]
    for blk in range(2):
        for mt in range(2):
            ti=blk*2+mt; pk=48+8*(ti%2)
            if ti>=2: it.append(('wait',(tag,ti-2),None))
            x=silu_items(S+16*ti,16,pk,3 if mt==0 else 31)
            it+=x[:44]+[(f"ds_write_b128 v14, {vr(pk,4)} offset:{imm0+(2*blk)*2048+mt*1024}",(tag,'h'))]
            it+=x[44:]+[(f"ds_write_b128 v14, {vr(pk+4,4)} offset:{imm0+(2*blk+1)*2048+mt*1024}",(tag,ti))]
    return it
def store_strip(S,sreg,tag):
    it=[]; k=0
    for blk in range(2):
        for p in range(2):
            for mt in range(2):
                u=88+4*(k%2); k+=1; b=S+16*(2*blk+mt)+8*p
                for c in range(4): it.append(f"v_cvt_pk_bf16_f32 v{u+c}, v{b+2*c}, v{b+2*c+1}")
                it.append((f"buffer_store_dwordx4 {vr(u,4)}, v{30 if mt==0 else 29}, s[4:7], {sreg} offen offset:{(2*blk+p)*256}{SC}",tag))
    return it
STEPS=[]
for ph in range(2):
    jobs=[('Q',9),('A',36),('B',36)] if ph==0 else [('A',36),('Q',9),('B',36)]
    for nm,n in jobs:
        for k in range(n): STEPS.append((ph,nm,k))
COL={(0,'A'):63,(0,'B'):64,(0,'Q'):65,(1,'A'):66,(1,'B'):67,(1,'Q'):68}
def dma_items(n,piece):
    if n>=len(STEPS): return []
    ph,nm,k=STEPS[n]; pitch=9216 if ph==0 else 1152; rb=44 if ph==0 else 54
    it=[]
    if piece==0:
        it.append(f"s_add_u32 m0, s41, {(n%NSLOT)*2048}")
        if nm=='Q': it.append(f"s_add_u32 s42, s{rb+k}, s{COL[(ph,nm)]}")
        elif k%4==0: it.append(f"s_add_u32 s42, s{rb+k//4}, s{COL[(ph,nm)]}")
        else: it.append(f"s_add_u32 s42, s42, {16*pitch}")
    it.append((f"buffer_load_dwordx4 v{4+2*ph+piece}, s[{12+4*ph}:{15+4*ph}], s42 offen{' offset:1024' if piece else ''} lds",('D',n,piece)))
    return it
def put(a,x):
    if isinstance(x,str): a(x)
    elif x[0]=='wait': a.wait(l=x[1],v=x[2])
    elif x[0]=='bar': a("s_barrier")
    elif x[0]=='grp':
        for y in x[1]: put(a,y)
    elif x[0]=='call': x[1](a)
    else: a(x[0],x[1])
def aread(a,u):
    n=u//2
    if n>=len(STEPS): return
    ph=STEPS[n][0]; blk=u%2
    if blk==0: a.wait(v=('D',n,1))
    b=AB+4*(u%4); o=(n%NSLOT)*2048
    a(f"ds_read_b64_tr_b16 {vr(b,2)}, v{8+2*ph+blk} offset:{o}",('Ax',u))
    a(f"ds_read_b64_tr_b16 {vr(b+2,2)}, v{8+2*ph+blk} offset:{o+(512 if ph==0 else 1024)}",('A',u))
def hread(t,mt):
    o=t*2048+mt*1024
    return (f"ds_read_b128 {XB(t,mt)}, v{12 if o<32768 else 13} offset:{o if o<32768 else o-32768}",('B',t,mt))
def spread(ns,wins):
    gaps=[[] for _ in range(ns*4)]
    for s0,s1,items in wins:
        g0,g1=int(s0*4),int(s1*4); m=g1-g0
        for k,x in enumerate(items): gaps[g0+(k*m)//len(items)].append(x)
    return gaps
PROBE={}
def probe(a,nm):
    if nm in PROBE: stamp(a,PROBE[nm],1)
def job(a,n0,ns,tile,slot,wins,jit=None):
    gaps=spread(ns,wins)
    for g,L in enumerate(gaps):
        if g%4 in (1,2): assert "m0" not in repr(L), (n0,g)
    for s in range(ns):
        n=n0+s; t=slot(s); probe(a,'n%d'%n)
        for blk in range(2):
            u=2*n+blk; fb=AB+4*(u%4)
            a.wait(l=[('A',u),('B',t,0),('B',t,1)])
            for mt in range(2):
                d=vr(tile(blk,mt),16)
                a(f"v_mfma_f32_32x32x16_bf16 {d}, {vr(fb,4)}, {XB(t,mt)}, {d if s>0 else 0}")
                if mt==0: aread(a,u+P)
                else:
                    for x in dma_items(n+D,blk): put(a,x)
                    if jit:
                        for x in jit(s,blk): put(a,x)
                for x in gaps[s*4+blk*2+mt]: put(a,x)
FCH=S1+48; GPK=S1
def uread(e,buf):
    return [(f"ds_read_b128 {vr(56+8*buf+4*mt,4)}, v12 offset:{e*2048+mt*1024}",('U',e,mt)) for mt in range(2)]
def gd_init(scol,sk,f=FCH,c2=20):
    it=[f"s_lshr_b32 s3, {scol}, 1","v_add_u32 v64, s3, v22","v_add_u32 v65, 32, v64"]
    for blk in range(2):
        d=64+blk
        it.append(f"v_mul_u32_u24 v66, {sk}, v{d}"); it.append(f"v_add_u32 v67, v66, v{d}")
        x=cos_mod(None,f+8*blk+6,66,68,23); y=cos_mod(None,f+8*blk+7,67,69,23); z=cos_mod(None,c2+blk,d,70)
        for q in range(6): it+= [x[q],y[q],z[q]]
    it+=[f"v_add_f32 v{c2}, v{c2}, v{c2}",f"v_add_f32 v{c2+1}, v{c2+1}, v{c2+1}"]
    return it
def gd_step(pk,patch=None,f=FCH,c2=20):
    it=[]
    for jj in range(8):
        for blk in range(2):
            b=f+8*blk; it.append(f"v_fma_f32 v{b+jj}, v{c2+blk}, v{b+(jj-1)%8}, -v{b+(jj-2)%8}")
        if jj%2==1:
            for blk in range(2):
                b=f+8*blk
                if jj==1 and patch:
                    it.append(('grp',patch+[f"v_cndmask_b32 v71, v{b}, v24, vcc",f"v_cvt_pk_bf16_f32 v{pk+4*blk}, v71, v{b+1}"]))
                else: it.append(f"v_cvt_pk_bf16_f32 v{pk+4*blk+jj//2}, v{b+jj-1}, v{b+jj}")
    return it
def ext_step(a,tile,pk,e,buf,fill):
    gaps=spread(1,[(0,1,fill)]) if fill else [[]]*4
    a.wait(l=[('U',e,0),('U',e,1)])
    for blk in range(2):
        for mt in range(2):
            d=vr(tile(blk,mt),16)
            a(f"v_mfma_f32_32x32x16_bf16 {d}, {vr(pk+4*blk,4)}, {vr(56+8*buf+4*mt,4)}, {d}")
            for x in gaps[blk*2+mt]: put(a,x)
def setflag(k): return ('grp',[f"s_mov_b64 exec, {1<<k}",(f"buffer_store_dword v25, v25, s[4:7], 0 offen{SC}",'fl'),"s_mov_b64 exec, -1"])
TAIL=[]
def check(name,loads,cmps,tag):
    def f(a):
        a.wait(v=tag)
        for x in cmps: a(x)
        a(f"s_cbranch_scc1 Lsp_{name}"); a(f"Lbk_{name}:")
        L=[f"Lsp_{name}:","s_mov_b32 s53, 0",f"Lsl_{name}:"]+[x[0] for x in loads]+["s_waitcnt vmcnt(0)","s_add_u32 s53, s53, 1","s_cmp_ge_u32 s53, 20000",f"s_cbranch_scc1 Lbk_{name}"]+cmps+[f"s_cbranch_scc1 Lsl_{name}","s_nop 4",f"s_branch Lbk_{name}"]
        TAIL.extend(L)
    return ('call',f)
CNT=[0]
def cond(name,cmpi,body,brop="s_cbranch_scc0",m=0):
    def f(a):
        CNT[0]+=1; lab=f"Lsk_{name}_{CNT[0]}"
        for x in cmpi: a(x)
        a(f"{brop} {lab}")
        st=a.fork(); body(a)
        e=a.fork(); a(f"{lab}:")
        if m: a.joinm([st,e])
        else: a.join([st,(e[0],e[1],st[2],st[3])])
    return ('call',f)
def unit_loads(dst,vo,sbase,tag,n=8):
    it=[f"s_mov_b32 s43, {sbase}"]
    for jp in range(n):
        it.append((f"buffer_load_dwordx4 {vr(dst+4*jp,4)}, v{vo}, s[4:7], s43 offen{SC}",(tag,jp)))
        if jp<n-1: it.append("s_add_u32 s43, s43, 9216")
    return it
def unit_sum(src,acc,tag):
    it=[]
    for jp in range(8):
        it.append(('wait',None,(tag,jp)))
        for c in range(4):
            it.append(f"v_dot2_f32_bf16 v{acc+2*c}, v{src+4*jp+c}, s20, {'v%d'%(acc+2*c) if jp else 0}")
            it.append(f"v_dot2_f32_bf16 v{acc+2*c+1}, v{src+4*jp+c}, s21, {'v%d'%(acc+2*c+1) if jp else 0}")
    for c in range(4): it.append(f"v_cvt_pk_bf16_f32 v{acc+c}, v{acc+2*c}, v{acc+2*c+1}")
    return it
def gen_kf(a,K,dbg=0,G=2,TW=(2.5,16,8,17,7),BT=(22,32),GW=(6,6,7,16.5,0,6,15,10,7),BG=(4,16,30),XB2=1,RF=6.75,AP=(14,18.75,25),BP=(8,19,27.5,32,28),PB=0,fin=1,PR=None,NOT1=0):
    TAIL.clear(); PROBE.clear()
    if dbg: PROBE.update({n:k for k,n in enumerate(PR.split('.') if PR else ['s%d'%k for k in range(10)])})
    khead(a,K)
    a("s_cmp_ge_u32 s2, 256"); a("s_cbranch_scc1 Lkf_end"); stamp(a,11,dbg)
    a("s_load_dwordx8 s[76:83], s[0:1], 0"); a("s_load_dwordx8 s[84:91], s[0:1], 32"); a("s_load_dwordx4 s[92:95], s[0:1], 64")
    a("s_lshr_b32 s43, s2, 3")
    code_prefetch(a,K,"Lkf_last","s43",39,40,0,s0=66)
    a("v_and_b32 v1, 63, v0"); a("v_lshrrev_b32 v2, 6, v0")
    lg={1:0,2:1,4:2,8:3}[G]
    a(f"s_bfe_u32 s37, s2, {(lg<<16)|(3-lg)}"); a(f"s_lshl_b32 s37, s37, {5-lg}"); a(f"s_lshr_b32 s3, s2, {3+lg}"); a("s_add_u32 s37, s37, s3")
    a("v_readfirstlane_b32 s38, v2")
    tile_voff(a,28,29,1,2,32*1152,40,41)
    a("s_mul_i32 s44, s37, 5"); a("s_lshr_b32 s44, s44, 2"); a("s_mul_i32 s3, s44, 57"); a("s_lshr_b32 s3, s3, 9"); a("s_mul_i32 s3, s3, 9"); a("s_sub_u32 s44, s44, s3")
    a("s_mul_i32 s3, s37, 1152"); a("s_lshl_b32 s43, s38, 11"); a("s_mov_b32 s10, 2359296"); a("s_mov_b32 s11, 0x20000")
    for p in range(9):
        if p: a(f"s_add_u32 s{44+p}, s{43+p}, 1"); a(f"s_cmp_eq_u32 s{44+p}, 9"); a(f"s_cselect_b32 s{44+p}, 0, s{44+p}")
        a(f"s_lshl_b32 s{54+p}, s{44+p}, 7"); a(f"s_add_u32 s42, s{54+p}, s3")
        if p==0: a("s_mov_b32 m0, s43"); a("s_waitcnt lgkmcnt(0)"); a("s_mov_b32 s8, s76"); a("s_and_b32 s9, s77, 0xffff")
        else: a(f"s_add_u32 m0, s43, {p*8192}")
        a(f"buffer_load_dwordx4 v28, s[8:11], s42 offen lds",('x',p))
        a(f"buffer_load_dwordx4 v29, s[8:11], s42 offen offset:1024 lds",('x',p))
    srd(a,4,94,0x2000000); a("s_mov_b64 s[72:73], s[92:93]")
    for d,b in ((12,84),(16,86),(20,78),(24,80),(32,90),(68,88)): a(f"s_mov_b64 s[{d}:{d+1}], s[{b}:{b+1}]")
    probe(a,'i0')
    def L(x): return [y.strip() for y in x.split(";") if y.strip()]
    def Gp(x): return ('grp',L(x))
    def fin_srd(d,size,off=None):
        return (f"s_add_u32 s{d}, s{d}, {off}; s_addc_u32 s{d+1}, s{d+1}, 0;" if off else "")+f"s_and_b32 s{d+1}, s{d+1}, 0xffff; s_mov_b32 s{d+2}, {size}; s_mov_b32 s{d+3}, 0x20000;"
    def S(dst,x,t="s3"): return f"s_add_u32 {dst}, {x}, s40; s_sub_u32 {t}, {dst}, 9; s_cmp_ge_u32 {dst}, 9; s_cselect_b32 {dst}, {t}, {dst};"
    XA=96
    PRE=L(f"""s_and_b32 s36, s2, {8//G-1}; s_lshl_b32 s36, s36, {lg}; s_bfe_u32 s3, s2, {(lg<<16)|3}; s_add_u32 s36, s36, s3;
      s_lshl_b32 s28, s36, 1; s_add_u32 s28, s28, s38; s_cmp_lt_u32 s38, 2; s_cselect_b32 s29, 1, 0;
      s_and_b32 s3, s36, 6; s_lshl_b32 s3, s3, 2; s_add_u32 s3, s3, s38; s_cmp_eq_u32 s3, 10;
      s_cselect_b32 s29, 1, s29; s_add_u32 s3, s36, 14; s_cmp_eq_u32 s38, 2; s_cselect_b32 s28, s3, s28;
      v_lshrrev_b32 v40, 5, v1; v_bfe_u32 v41, v1, 1, 3; v_xor_b32 v41, v41, v40; v_and_b32 v42, 31, v1; v_lshlrev_b32 v42, 7, v42;
      s_mov_b32 s100, 7456541; s_movk_i32 s101, 576""")
    for k in range(4): PRE+=L(f"v_xor_b32 v43, {2*k}, v41; v_lshl_add_u32 v{XA+k}, v43, 4, v42")
    IDS=L(f"""s_and_b32 s3, s38, 1; s_lshl_b32 s75, s36, 1; s_add_u32 s75, s75, s3; s_mov_b32 s74, s37; s_lshr_b32 s30, s38, 1;
      s_and_b32 s3, s36, 6; s_lshl_b32 s3, s3, 2; s_add_u32 s3, s3, s38; s_add_u32 s66, s36, 10; s_cmp_eq_u32 s3, 24;
      s_cselect_b32 s75, s66, s75; s_cselect_b32 s30, 1, s30;
      s_lshl_b32 s3, s36, 2; s_add_u32 s3, s3, s38; s_cmp_eq_u32 s3, 5; s_cselect_b32 s3, s37, 99; s_cmp_lt_u32 s3, 18;
      s_cselect_b32 s75, s37, s75; s_cselect_b32 s74, 32, s74; s_cselect_b32 s30, 1, s30;
      """)
    FLG=[Gp(f"v_mov_b32 v25, {OOB}; s_mul_i32 s3, s28, {FS//4}; s_add_u32 s3, s3, s37; s_lshl_b32 s3, s3, 2"),Gp(f"s_add_u32 s3, s3, {FR}; s_cmp_eq_u32 s29, 1; s_cselect_b32 s3, s3, {OOB}; v_writelane_b32 v25, s3, 0"),
      Gp(f"s_mul_i32 s3, s75, {FS//4}; s_add_u32 s3, s3, s74; s_lshl_b32 s3, s3, 2"),Gp(f"s_add_u32 s3, s3, {FE}; s_cmp_eq_u32 s30, 1; s_cselect_b32 s3, s3, {OOB}; v_writelane_b32 v25, s3, 1")]
    FLG+=L(f"""s_mul_i32 s3, s37, 12; s_add_u32 s3, s3, s38; s_mul_i32 s3, s3, {FS//4}; s_add_u32 s3, s3, s36; s_lshl_b32 s3, s3, 2; s_add_u32 s3, s3, {FF};
      v_writelane_b32 v25, s3, 2; s_add_u32 s3, s3, {4*FS}; v_writelane_b32 v25, s3, 3; s_add_u32 s3, s3, {4*FS}; v_writelane_b32 v25, s3, 4""")
    ZF=L(f"""s_mul_i32 s3, s37, {3*FS}; s_add_u32 s3, s3, s36; s_lshl_b32 s3, s3, 2; s_add_u32 s3, s3, {FF}; v_mul_u32_u24 v42, {FS}, v1; v_add_u32 v42, s3, v42; v_mov_b32 v43, 0;
      s_mul_i32 s67, s36, {FS//2}; s_add_u32 s3, s67, s37; s_lshl_b32 s3, s3, 2; s_add_u32 s3, s3, {FR}; v_writelane_b32 v42, s3, 12; s_add_u32 s3, s3, {FS}; v_writelane_b32 v42, s3, 13;
      s_add_u32 s3, s3, {FE-FR}; v_writelane_b32 v42, s3, 16; s_sub_u32 s3, s3, {FS}; v_writelane_b32 v42, s3, 15;
      s_lshr_b32 s67, s67, 1; s_add_u32 s67, s67, s37; s_lshl_b32 s67, s67, 2;
      s_add_u32 s3, s67, {FR+14*FS}; s_and_b32 s66, s36, 6; s_cmp_eq_u32 s66, 2; s_cselect_b32 s3, s3, {OOB}; v_writelane_b32 v42, s3, 14;
      s_add_u32 s3, s67, {FE+10*FS}; s_cmp_eq_u32 s66, 6; s_cselect_b32 s3, s3, {OOB}; v_writelane_b32 v42, s3, 17;
      s_mul_i32 s3, s37, {FS}; s_add_u32 s3, s3, {FE+128}; s_cmp_eq_u32 s36, 1; s_cselect_b32 s66, s37, 99; s_cmp_lt_u32 s66, 18; s_cselect_b32 s3, s3, {OOB}; v_writelane_b32 v42, s3, 18""")
    ZF+=[('grp',["s_mov_b64 exec, 0x7ffff",(f"buffer_store_dword v43, v42, s[4:7], 0 offen{SC}",'z'),"s_mov_b64 exec, -1"])]
    RING_=L(f"""s_mul_i32 s40, s37, 57; s_lshr_b32 s40, s40, 9; s_mul_i32 s40, s40, 9; s_sub_u32 s40, s37, s40;
      s_mul_i32 s41, s38, {NSLOT*2048}; s_add_u32 s41, s41, {RING}; s_mul_i32 s3, s36, 1152; {fin_srd(12,0,'s3')} s_sub_u32 s14, 5308416, s3;"""
      +"".join(f"s_mul_i32 s{44+p}, s{44+p}, {64*9216};" for p in range(9))
      +f"""{S('s65',8)} s_lshl_b32 s97, s65, 7; s_mul_i32 s3, s38, {16*9216}; s_add_u32 s65, s97, s3;
      s_lshl_b32 s66, s38, 1; {S('s63','s66')} s_add_u32 s66, s66, 1; {S('s64','s66')} s_lshl_b32 s63, s63, 7; s_lshl_b32 s64, s64, 7;
      v_lshrrev_b32 v69, 3, v1; v_bfe_u32 v70, v1, 4, 1; v_lshlrev_b32 v70, 2, v70; v_xor_b32 v70, v70, v1; v_and_b32 v70, 7, v70; v_lshlrev_b32 v70, 4, v70;
      v_mul_u32_u24 v4, 9216, v69; v_add_u32 v4, v4, v70; v_add_u32 v5, {8*9216-1024}, v4;
      v_mul_u32_u24 v6, 1152, v69; v_add_u32 v6, v6, v70; v_add_u32 v7, {8*1152-1024}, v6""")
    def AFR(t): return L(f"""v_bfe_u32 v{t}, v1, 2, 2; v_lshlrev_b32 v{t+1}, 7, v{t}; v_lshrrev_b32 v{t}, 1, v{t}; v_lshl_add_u32 v{t+1}, v{t}, 6, v{t+1};
      v_bfe_u32 v{t}, v1, 4, 1; v_lshl_add_u32 v{t+1}, v{t}, 5, v{t+1}; v_add_u32 v{t+1}, s41, v{t+1};
      v_and_b32 v8, 3, v1; v_lshl_add_u32 v8, v8, 3, v{t+1};
      v_and_b32 v{t}, 1, v1; v_lshl_add_u32 v{t+1}, v{t}, 4, v{t+1}; v_bfe_u32 v{t}, v1, 1, 1; v_lshl_add_u32 v{t+1}, v{t}, 3, v{t+1};
      v_lshrrev_b32 v{t}, 5, v1; v_lshl_add_u32 v8, v{t}, 10, v8; v_xor_b32 v9, 64, v8; v_lshl_add_u32 v10, v{t}, 9, v{t+1}; v_xor_b32 v11, 64, v10;
      v_lshlrev_b32 v12, 4, v1; v_add_u32 v28, {TRIG}, v12""")+[f"v_add_u32 v{XA+4+k}, 0x10000, v{XA+k}" for k in range(4)]
    WSRD=L(fin_srd(20,1183744)+fin_srd(24,1183744))
    QW=[Gp("s_lshl_b32 s3, s38, 13; s_add_u32 s3, s3, 8192; v_add_u32 v14, s3, v12; v_add_u32 v13, 32768, v12"),
        Gp("s_lshr_b32 s3, s38, 1; s_lshl_b32 s3, s3, 12; s_and_b32 s43, s38, 1"),Gp("s_lshl_b32 s43, s43, 10; s_add_u32 s3, s3, s43; v_add_u32 v15, s3, v12")]
    for k in range(1,4): QW+=[Gp(f"s_add_u32 s3, s38, {k}; s_and_b32 s3, s3, 3; s_mul_i32 s3, s3, 12288"),Gp(f"s_add_u32 s3, s3, {PX+(k-1)*4096}; v_add_u32 v{15+k}, s3, v12")]
    QW+=L(f"""s_mul_i32 s96, s38, 12288; s_add_u32 s96, s96, {PX}; v_add_u32 v19, s96, v12;
      v_lshrrev_b32 v41, 2, v1; v_lshlrev_b32 v26, 7, v41; v_and_b32 v41, 1, v1; v_lshl_add_u32 v26, v41, 4, v26; v_bfe_u32 v41, v1, 1, 1; v_lshl_add_u32 v26, v41, 3, v26; v_add_u32 v26, s96, v26;
      s_mul_i32 s31, s74, 18; s_add_u32 s31, s31, s75; s_lshl_b32 s31, s31, 12; s_add_u32 s31, s31, {WS_R}""")
    QW=FLG+QW
    AW=[Gp("s_lshl_b32 s8, s74, 7; s_cmp_eq_u32 s74, 32; s_cselect_b32 s8, 64, s8")]+L(f"s_lshl_b32 s26, s75, 12; s_add_u32 s8, s8, s26; s_add_u32 s8, s8, {WS_E}")
    AW+=[Gp(f"s_cmp_eq_u32 s30, 1; s_cselect_b32 s8, s8, {OOB}"),"s_add_u32 s9, s8, 1179648","s_and_b32 s26, s74, 31",Gp(f"s_cmp_eq_u32 s26, 0; s_cselect_b32 s10, {OOB}, s8"),"s_add_u32 s11, s10, 1179648"]
    AW+=L(f"""s_mov_b32 s66, s63; s_mov_b32 s67, s64; s_mul_i32 s26, s37, 589824; s_mul_i32 s27, s36, 9216; s_add_u32 s27, s27, s26;
      s_lshl_b32 s69, s63, 3; s_add_u32 s69, s69, s27; s_lshl_b32 s70, s64, 3; s_add_u32 s70, s70, s27;
      s_lshl_b32 s71, s97, 3; s_add_u32 s71, s71, s27; s_lshr_b32 s26, s38, 1; s_lshl_b32 s26, s26, 9; s_add_u32 s71, s71, s26;
      s_and_b32 s26, s38, 1; s_mul_i32 s26, s26, 294912; s_add_u32 s71, s71, s26; s_mul_i32 s26, s38, {16*1152}; s_add_u32 s68, s97, s26;
      s_mul_i32 s26, s36, 663552""")+[Gp("s_add_u32 s16, s16, s26; s_addc_u32 s17, s17, 0")]+L(fin_srd(16,663552)+fin_srd(32,2359296))
    AW+=L(f"""v_lshrrev_b32 v60, 5, v1; v_bfe_u32 v61, v1, 3, 2; v_mul_u32_u24 v30, 73728, v61; v_and_b32 v61, 7, v1; v_lshl_add_u32 v30, v61, 4, v30; v_lshl_add_u32 v30, v60, 7, v30; v_add_u32 v29, 294912, v30;
      v_and_b32 v61, 15, v1; v_mul_u32_u24 v27, 73728, v61; v_lshrrev_b32 v61, 4, v1; v_lshl_add_u32 v27, v61, 4, v27;
      v_and_b32 v22, 19, v1; v_bfe_u32 v61, v1, 2, 1; v_lshl_add_u32 v22, v61, 3, v22; v_bfe_u32 v61, v1, 3, 1; v_lshl_add_u32 v22, v61, 2, v22;
      v_cvt_f32_u32 v23, v60; v_mul_f32 v23, 0.25, v23; v_and_b32 v24, v60, v1; v_lshlrev_b32 v24, 31, v24; v_or_b32 v24, 0.5, v24""")
    for cb in range(9):
        x = 8 if cb==0 else (2*(cb-1) if cb<=4 else 2*(cb-5)+1)
        AW+=[Gp(S(f"s{54+cb}",x,"s26")),f"s_mul_i32 s{54+cb}, s{54+cb}, {64*1152}"]
    for x in PRE: put(a,x)
    probe(a,'s0')
    def xread(t,mt):
        if t<32: a(f"ds_read_b128 {XB(t,mt)}, v{XA+t%4} offset:{(t//4)*8192+mt*4096}",('B',t,mt))
        else: a(f"ds_read_b128 {XB(t,mt)}, v{XA+4+t%4} offset:{mt*4096}",('B',t,mt))
    def wloads(a,t=104):
        def g0(a):
            a(f"v_and_b32 v{t}, 31, v1"); a(f"v_lshlrev_b32 v{t}, 6, v{t}"); a(f"v_add_u32 v{t}, s74, v{t}"); a(f"v_sub_u32 v{t+1}, 2048, v{t}"); a(f"v_and_b32 v{t+1}, 2047, v{t+1}")
            a(f"v_mul_u32_u24 v{t}, 578, v{t}"); a(f"v_mul_u32_u24 v{t+1}, 578, v{t+1}")
            for k,(vo,sr,o) in enumerate(((t,20,0),(t,24,0),(t+1,20,0),(t+1,24,0),(t,20,576),(t,24,576),(t+1,20,576),(t+1,24,576))):
                a(f"buffer_load_ushort v{128+k}, v{vo}, s[{sr}:{sr+3}], 0 offen offset:{o}")
        put(a,cond("g0l",["s_sub_u32 s3, s30, 1","s_or_b32 s3, s3, s75"],g0,"s_cbranch_scc1"))
    def WL(t): return L(f"""v_lshrrev_b32 v{t}, 1, v1; v_lshl_add_u32 v{t}, v{t}, 6, s74; v_sub_u32 v{t+1}, 2048, v{t}; v_and_b32 v{t+1}, 2047, v{t+1}; v_and_b32 v{t+2}, 1, v1; v_lshlrev_b32 v{t+2}, 4, v{t+2};
          s_movk_i32 s67, 578; v_mad_u32_u24 v{t}, v{t}, s67, v{t+2}; v_mad_u32_u24 v{t+1}, v{t+1}, s67, v{t+2}; s_lshl_b32 s67, s75, 5""")+[
          (f"buffer_load_dwordx4 {vr(d,4)}, v{t+o}, s[{sr}:{sr+3}], s67 offen",'W') for d,o,sr in ((32,0,20),(36,0,24),(88,1,20),(92,1,24))]+[('call',lambda a:wloads(a,t))]
    def xloop(stepfn,bars,pre=None,LEAD=4):
        for u in range(36+LEAD):
            for k,(ub,wl,wv,post) in enumerate(bars):
                if ub==u:
                    probe(a,'z%d'%k); a.wait(l=wl,v=wv); probe(a,'y%d'%k); a("s_barrier"); probe(a,'x%d'%k)
                    for x in post: put(a,x)
            if u<36:
                xread(u,0); xread(u,1)
                if u%4==0 and pre: pre(u//4)
            if u>=LEAD: stepfn(u-LEAD)
    DM=[('grp',dma_items(n//2,n%2)) for n in range(2*D)]
    def atom(y):
        o=[]
        for z in y:
            if isinstance(z,str) and z.startswith(("s_cselect","s_addc")): o[-1]=('grp',(o[-1][1] if isinstance(o[-1],tuple) else [o[-1]])+[z])
            else: o.append(z)
        return o
    def mix(x,y):
        o=[]; y=atom(y)
        for k in range(len(x)): o+=x[k:k+1]+y[(k*len(y))//len(x):((k+1)*len(y))//len(x)]
        return o
    a("s_cmp_eq_u32 s29, 0"); a("s_cbranch_scc1 Lkf_notask")
    st0=a.fork()
    YA=160; HB=192
    a("v_and_b32 v57, 15, v1"); a("s_lshl_b32 s3, s28, 4"); a("v_add_u32 v57, s3, v57")
    a("v_bfe_u32 v59, v1, 4, 1"); a("v_cvt_f32_u32 v58, v59"); a("v_mul_f32 v58, 0.25, v58")
    a("v_lshl_add_u32 v59, v57, 1, v59"); a("v_cmp_eq_u32 vcc, 1, v59"); a("v_mov_b32 v59, 288"); a("v_cndmask_b32 v57, v57, v59, vcc")
    a("v_mov_b32 v59, 0"); a("v_cndmask_b32 v58, v58, v59, vcc")
    a("s_lshl_b32 s3, s54, 0xffffffff & 31") if 0 else None
    a("s_lshr_b32 s3, s54, 1"); a("v_lshl_add_u32 v59, v40, 3, s3"); a("v_mul_u32_u24 v59, v59, v57")
    for x in cos_mod(a,69,59,69,58)[:-1]: a(x)
    a("v_cvt_f32_u32 v68, v57"); a(f"v_mul_f32 v68, {f2u(1/576)}, v68")
    a(f"v_mul_f32 v56, {f2u(16.0)}, v68")
    for j in range(16): a(f"v_fmamk_f32 v{40+j}, v68, {f2u(float(j if j<8 else j+8))}, v69")
    a("v_cos_f32 v56, v56")
    for j in range(16): a(f"v_cos_f32 v{40+j}, v{40+j}")
    a("v_add_f32 v56, v56, v56")
    FB=lambda t:(60 if (t//2)%2==0 else 108)+4*(t%2)
    def cvtF(t):
        c=40 if t%2==0 else 48
        return [f"v_cvt_pk_bf16_f32 v{FB(t)+j}, v{c+2*j}, v{c+2*j+1}" for j in range(4)]
    def pkF(d,o): return [f"v_fma_f32 v{d+j}, v56, v{o+j}, -v{d+j}" for j in range(8)]
    for x in cvtF(0)+cvtF(1): a(x)
    TF=spread(17,[(0,TW[0],RING_),(TW[4],TW[3],DM),(TW[0],TW[2],atom(IDS+WSRD+WL(104)+AFR(124)))])
    def stepT(t):
        if t%2==0: return
        t-=1; more=t<34; probe(a,'t%d'%t)
        def M(mt,tt): a(f"v_mfma_f32_32x32x16_bf16 {vr(YA+16*mt,16)}, {XB(tt,mt)}, {vr(FB(tt),4)}, {vr(YA+16*mt,16) if tt else 0}")
        V=[pkF(40,48)[:6],pkF(40,48)[6:]+cvtF(t+2),pkF(48,40)[:6],pkF(48,40)[6:]+cvtF(t+3)]
        for g,(mt,tt) in enumerate(((0,t),(0,t+1),(1,t),(1,t+1))):
            if g%2==0: a.wait(l=[('B',t,mt),('B',t+1,mt)])
            M(mt,tt)
            if more:
                for x in V[g]+TF[2*t+g]: put(a,x)
    xloop(stepT,([(0,None,('x',2),[]),(12,None,('x',8),[])] if XB2 else [(0,None,('x',8),[])])+[(BT[0],None,None,[(f"ds_read_b128 {vr(HB+4*k,4)}, v28 offset:{k*1024}",'hb') for k in range(8)]),(BT[1],'hb',None,[])])
    probe(a,'s1')
    a("v_and_b32 v68, 1, v1"); a("v_cvt_f32_u32 v68, v68"); a(f"v_mul_f32 v68, {f2u(-0.25)}, v68"); a("v_cvt_f32_u32 v69, s37"); a(f"v_fmamk_f32 v68, v69, {f2u(1/64)}, v68"); a("v_cos_f32 v68, v68")
    a("v_and_b32 v70, 31, v1"); a("v_mul_u32_u24 v70, 73728, v70"); a("v_lshrrev_b32 v69, 5, v1"); a("v_lshl_add_u32 v70, v69, 4, v70")
    a("v_cvt_pk_bf16_f32 v64, v68, -v68")
    a("v_and_b32 v71, 1, v1"); a("v_lshlrev_b32 v71, 6, v71"); a("v_lshl_add_u32 v71, v69, 4, v71"); a(f"v_add_u32 v71, {32*73728}, v71")
    for k in range(1,4): a(f"v_mov_b32 v{64+k}, v64")
    a("s_lshl_b32 s3, s28, 5"); a("s_add_u32 s3, s3, s37"); a("s_lshl_b32 s3, s3, 7"); a(f"s_add_u32 s3, s3, {WS_R}")
    for k in range(16): a(f"v_cvt_pk_bf16_f32 v{40+k}, v{YA+2*k}, v{YA+2*k+1}")
    for s in range(4):
        for nt in range(3):
            d=vr(96+16*nt if nt<2 else YA,16)
            a(f"v_mfma_f32_32x32x16_bf16 {d}, {vr(40+4*s,4)}, {vr(HB+8*s+4*nt,4) if nt<2 else 'v[64:67]'}, {d if s else 0}")
    for nt in range(3):
        if nt==2: a("s_mov_b32 exec_lo, 3"); a("s_mov_b32 exec_hi, 3")
        for qh in range(2):
            b=(96+16*nt if nt<2 else YA)+8*qh; u=176+4*(2*nt+qh)
            for k in range(4): a(f"v_cvt_pk_bf16_f32 v{u+k}, v{b+2*k}, v{b+2*k+1}")
            a(f"buffer_store_dwordx4 {vr(u,4)}, v{70 if nt<2 else 71}, s[4:7], s3 offen offset:{(nt%2)*64+qh*32}{SC}",'R')
    a("s_mov_b64 exec, -1")
    a("s_branch Lkf_join0")
    e1=a.fork(); a.restore(st0)
    a("Lkf_notask:")
    a("s_cmp_lg_u32 s38, 3"); a("s_cbranch_scc1 Lkf_pn")
    stn=a.fork()
    for x in L(fin_srd(68,1152)+f"v_lshlrev_b32 v12, 4, v1; s_mov_b32 m0, {RING+3*NSLOT*2048+9*2048}"): a(x)
    a("buffer_load_dwordx4 v12, s[68:71], 0 offen lds",'gw'); a("buffer_load_dwordx4 v12, s[68:71], 0 offen offset:1024 lds",'gw')
    for x in ZF: put(a,x)
    a.wait(v=('x',2 if XB2 else 8)); a("s_barrier")
    for x in RING_+AFR(40): put(a,x)
    HT=80
    HBI=L(f"""v_and_b32 v77, 31, v1; v_cvt_f32_u32 v76, v77; v_mul_f32 v76, {f2u(1/64)}, v76;
      v_lshrrev_b32 v77, 5, v1; v_lshlrev_b32 v77, 7, v77; v_add_u32 v77, s37, v77; v_cvt_f32_u32 v77, v77; v_mul_f32 v77, {f2u(1/32)}, v77; v_mul_f32 v77, v77, v76;
      v_mul_f32 v78, {f2u(8.0)}, v76; v_cos_f32 v78, v78""")
    HR=[HT,HT+4,136,140]
    for h in range(2):
        HBI+=[f"v_fmamk_f32 v{HR[2*h+1]+r}, v76, {f2u(float(8*h+r))}, v77" for r in range(4)]
        for r in range(4): HBI+=[f"v_cos_f32 v{HR[2*h]+r}, v{HR[2*h+1]+r}",f"v_sin_f32 v{HR[2*h+1]+r}, v{HR[2*h+1]+r}"]
    HBI+=["v_add_f32 v78, v78, v78"]
    for h in range(8):
        for nt in range(2):
            b=HR[2*(h%2)+nt]; o=HR[2*((h+1)%2)+nt]
            if h>=2: HBI+=[f"v_fma_f32 v{b+r}, v78, v{o+r}, -v{b+r}" for r in range(4)]
            HBI+=[f"v_cvt_pk_bf16_f32 v{HB+8*(h//2)+4*nt+2*(h%2)+q}, v{b+2*q}, v{b+2*q+1}" for q in range(2)]
    HBI+=[(f"ds_write_b128 v28, {vr(HB+4*k,4)} offset:{k*1024}",'hw') for k in range(8)]
    TG=L(f"v_and_b32 v76, 15, v1; v_cvt_f32_u32 v76, v76; v_mul_f32 v76, {f2u(1/32)}, v76; v_add_f32 v77, 0.5, v76; v_lshrrev_b32 v78, 4, v1; v_lshlrev_b32 v78, 2, v78; v_cvt_f32_u32 v78, v78")
    for jj in range(0,8,2):
        TG+=[f"v_add_f32 v{80+e}, {f2u(float(16*((jj+e)//4)+(jj+e)%4))}, v78" for e in range(2)]
        for mt in range(2):
            TG+=[f"v_mul_f32 v{82+e}, v{80+e}, v{76+mt}" for e in range(2)]
            for e in range(2): TG+=[f"v_cos_f32 v{84+e}, v{82+e}",f"v_sin_f32 v{86+e}, v{82+e}"]
            TG+=[f"v_cvt_pk_bf16_f32 v{192+4*mt+jj//2}, v84, v85",f"v_cvt_pk_bf16_f32 v{200+4*mt+jj//2}, v86, v87",f"v_cvt_pk_bf16_f32 v{208+4*mt+jj//2}, -v86, -v87"]
    TG+=[f"ds_write_b128 v28, {vr(192+4*k,4)} offset:{k*1024}" for k in range(6)]
    TG=spread(18,[(GW[4],GW[0],HBI),(GW[5],GW[6],DM),(GW[1],GW[2],atom(IDS+WSRD)),(GW[8],GW[8]+1,WL(136)),(GW[7],GW[3],TG[:-6]),(GW[3],GW[3]+1,TG[-6:])]); GA=lambda t,mt:(YA if t%2==0 else 104)+16*mt
    a("v_lshrrev_b32 v40, 5, v1"); a("v_lshlrev_b32 v40, 4, v40"); a(f"s_add_u32 s3, s41, {9*2048}"); a("v_add_u32 v40, s3, v40")
    def preG(p):
        if p==0: probe(a,'ga'); a.wait(v='gw'); probe(a,'gb')
        a(f"v_add_u32 v41, s{54+p}, v40")
        for k in range(4): a(f"ds_read_b128 {vr(44+16*(p%2)+4*k,4)}, v41 offset:{32*k}",('gw',4*p+k))
    def stepG(t):
        probe(a,'g%d'%t)
        a.wait(l=[('B',t,0),('B',t,1),('gw',t)])
        for mt in range(2):
            a(f"v_mfma_f32_32x32x16_bf16 {vr(GA(t,mt),16)}, {vr(44+16*((t//4)%2)+4*(t%4),4)}, {XB(t,mt)}, {vr(GA(t,mt),16) if t>1 else 0}")
            for x in TG[2*t+mt]: put(a,x)
    AT=L("s_and_b32 s67, s2, 7; s_lshl_b32 s67, s67, 5; v_mov_b32 v42, s67; v_mov_b32 v43, 1; s_mov_b64 exec, 1; global_atomic_add v42, v43, s[72:73] sc1; s_mov_b64 exec, -1")
    xloop(stepG,([(BG[0],None,('x',8),[])] if XB2 else [])+[(BG[1],'hw','z',AT),(BG[2],None,None,[])],preG)
    probe(a,'s1')
    a("v_and_b32 v44, 31, v1"); a("v_lshlrev_b32 v44, 2, v44"); a(f"v_add_u32 v44, {GATE}, v44"); a(f"v_mov_b32 v45, {f2u(1e30)}")
    for mt in range(2):
        z=YA+16*mt; a(f"v_add_f32 v{z}, v{z}, v{104+16*mt}")
        a(f"v_mul_f32 v40, {f2u(1.4426950408889634)}, v{z}"); a("v_exp_f32 v41, v40"); a("v_exp_f32 v42, -v40"); a("v_add_f32 v41, 1.0, v41"); a("v_add_f32 v42, 1.0, v42")
        a("v_min_f32 v41, v41, v45"); a("v_rcp_f32 v42, v42"); a(f"v_mul_f32 v42, {f2u(2.0/(2048*576))}, v42")
        a(f"ds_write_b32 v44, v41 offset:{128*mt}"); a(f"ds_write_b32 v44, v42 offset:{256+128*mt}")
    a("s_branch Lkf_join0")
    e2=a.fork(); a.restore(stn)
    a("Lkf_pn:")
    a.wait(v=('x',2 if XB2 else 8)); a("s_barrier")
    for x in RING_+AFR(40)+DM[:8]: put(a,x)
    if XB2: a.wait(v=('x',8)); a("s_barrier")
    for x in IDS+WSRD+WL(104)+DM[8:]: put(a,x)
    xloop(lambda t: None,[(PB,None,None,[]),(37,None,None,[])])
    probe(a,'s1')
    e3=a.fork()
    a("Lkf_join0:"); a("s_waitcnt lgkmcnt(0)")
    a.joinm([(e[0],e[1],[],e[3]) for e in (e1,e2,e3)])
    gen_main(a,dbg,fin,QW,AW,RF,AP,BP)
    a("Lkf_end:"); a("s_endpgm")
    for l in TAIL: a.raw(l)
    a("Lkf_last:"); a("s_endpgm")
def variants(a,fn,name):
    for w in range(1,4):
        a(f"s_cmp_eq_u32 s38, {w}"); a(f"s_cbranch_scc1 L{name}_{w}")
    st=a.fork(); ends=[]
    for w in range(4):
        a.restore(st)
        if w: a(f"L{name}_{w}:")
        fn(w)
        if w<3: a(f"s_branch L{name}_j")
        ends.append(a.fork())
    a(f"L{name}_j:"); a.join(ends)
B0=["s_sub_u32 s3, s30, 1","s_or_b32 s3, s3, s75"]
def q_reduce():
    w1=[(f"ds_write_b128 v{15+k}, {vr(S1+16*k+4*c,4)} offset:{c*1024}",'pw') for k in range(1,4) for c in range(4)]
    w2=[('wait','pw',None),('bar',)]+[(f"ds_read_b128 {vr(S1+16+4*c,4)}, v19 offset:{c*1024}",('pr',c)) for c in range(12)]
    w3=[]
    for k in range(3):
        w3.append(('wait',('pr',4*k+3),None))
        w3+=[f"v_add_f32 v{S1+r}, v{S1+r}, v{S1+16+16*k+r}" for r in range(16)]
    return w1,w2,w3
def m_fwd():
    TC,TS,TN=160,168,176; Q=184; SS=[200,208,216,40]
    it=[(f"ds_read_b128 {vr(160+4*k,4)}, v28 offset:{k*1024}",'mt') for k in range(6)]
    it.append(('wait',None,'Rt'))
    for k in range(4):
        it.append((f"ds_read_b64_tr_b16 {vr(Q+4*k,2)}, v26 offset:{32*k}",'mq')); it.append((f"ds_read_b64_tr_b16 {vr(Q+4*k+2,2)}, v26 offset:{32*k+2048}",'mq'))
    it.append(('wait','mq',None))
    QA,QB,QC,QD=Q,Q+4,Q+8,Q+12
    cmb=((QA,QC,TN),(QD,QB,TS),(QB,QD,TN),(QC,QA,TS))
    for mt in range(2):
        for k,(x,y,T) in enumerate(cmb): it.append(f"v_mfma_f32_16x16x32_bf16 {vr(SS[k]+4*mt,4)}, {vr(TC+4*mt,4)}, {vr(x,4)}, 0")
        for k,(x,y,T) in enumerate(cmb): it.append(f"v_mfma_f32_16x16x32_bf16 {vr(SS[k]+4*mt,4)}, {vr(T+4*mt,4)}, {vr(y,4)}, {vr(SS[k]+4*mt,4)}")
    XR,XR2,XI,XI2=200,48,56,216
    for e in range(8):
        it+=[f"v_sub_f32 v{XR2+e}, v{SS[0]+e}, v{SS[1]+e}",f"v_add_f32 v{XR+e}, v{SS[0]+e}, v{SS[1]+e}",f"v_sub_f32 v{XI+e}, v{SS[2]+e}, v{SS[3]+e}",f"v_add_f32 v{XI2+e}, v{SS[2]+e}, v{SS[3]+e}"]
    ARR=(XR,XI,XR2,XI2)
    def sp1(a):
        a("v_lshrrev_b32 v64, 4, v1"); a("v_lshlrev_b32 v64, 4, v64"); a("v_add_u32 v64, s96, v64")
        a("v_and_b32 v65, 31, v1"); a("v_lshlrev_b32 v65, 2, v65"); a("v_add_u32 v65, s96, v65")
        a("s_mov_b32 exec_lo, 0x10001"); a("s_mov_b32 exec_hi, 0x10001")
        for k,r in enumerate(ARR):
            for h in range(2): a(f"ds_write_b128 v64, {vr(r+4*h,4)} offset:{128*k+64*h}")
        a("s_mov_b64 exec, -1"); a("s_waitcnt lgkmcnt(0)")
        for k in range(4): a(f"ds_read_b32 v{184+k}, v65 offset:{128*k}")
        a(f"ds_read_b128 v[188:191], v28 offset:{G0-TRIG}"); a("s_waitcnt lgkmcnt(0)")
        xr,xi,xr2,xi2,g1r,g1i,g2r,g2i=range(184,192)
        for d,L in ((192,((xr,g1r,1),(xi,g1i,-1),(xr2,g2r,1),(xi2,g2i,1))),(193,((xr,g1i,1),(xi,g1r,1),(xr2,g2i,1),(xi2,g2r,-1))),
                    (194,((xr2,g1r,1),(xi2,g1i,1),(xr,g2r,1),(xi,g2i,-1))),(195,((xi2,g1r,1),(xr2,g1i,-1),(xr,g2i,-1),(xi,g2r,-1)))):
            for n,(p,q,sg) in enumerate(L):
                if n==0: a(f"v_mul_f32 v{d}, v{p}, v{q}")
                else: a(f"v_fma_f32 v{d}, {'-' if sg<0 else ''}v{p}, v{q}, v{d}")
        for k in range(4): a(f"ds_write_b32 v65, v{192+k} offset:{128*k}")
        a("s_waitcnt lgkmcnt(0)")
    it.append(cond("sp1",B0,sp1,"s_cbranch_scc1"))
    for e in range(8):
        for (w,xr,xi,t) in ((32+e//2,XR+e,XI+e,64+(e%2)*4),(88+e//2,XR2+e,XI2+e,184+(e%2)*4)):
            it+=[(f"v_lshlrev_b32 v{t+q}, 16, v{w+4*q}" if e%2==0 else f"v_and_b32 v{t+q}, 0xffff0000, v{w+4*q}") for q in range(2)]
        for (w,xr,xi,t) in ((32+e//2,XR+e,XI+e,64+(e%2)*4),(88+e//2,XR2+e,XI2+e,184+(e%2)*4)):
            it+=[f"v_mul_f32 v{t+2}, v{xr}, v{t+1}",f"v_mul_f32 v{xr}, v{xr}, v{t}",f"v_fma_f32 v{xr}, -v{xi}, v{t+1}, v{xr}",f"v_fma_f32 v{xi}, v{xi}, v{t}, v{t+2}"]
    def sp2(a):
        a("v_lshrrev_b32 v64, 4, v1"); a("v_lshlrev_b32 v64, 4, v64"); a("v_add_u32 v64, s96, v64")
        a("s_mov_b32 exec_lo, 0x10001"); a("s_mov_b32 exec_hi, 0x10001")
        for k,r in enumerate(ARR):
            for h in range(2): a(f"ds_read_b128 {vr(r+4*h,4)}, v64 offset:{128*k+64*h}")
        a("s_waitcnt lgkmcnt(0)"); a("s_mov_b64 exec, -1")
    it.append(cond("sp2",B0,sp2,"s_cbranch_scc1"))
    PR,PI,PR2,PI2=XR,XI,XR2,XI2; DE,BE=208,40
    for e in range(0,8,2):
        for q in range(2): it+=[f"v_sub_f32 v{DE+e+q}, v{PR+e+q}, v{PR2+e+q}",f"v_add_f32 v{PR+e+q}, v{PR+e+q}, v{PR2+e+q}",f"v_sub_f32 v{BE+e+q}, v{PI+e+q}, v{PI2+e+q}",f"v_add_f32 v{PI+e+q}, v{PI+e+q}, v{PI2+e+q}"]
        for d,s in ((32,PR),(36,BE),(88,PI),(92,DE)): it.append(f"v_cvt_pk_bf16_f32 v{d+e//2}, v{s+e}, v{s+e+1}")
    return it
def m_inv():
    pa,pb,pg,pd=32,36,88,92; O=96
    it=[(f"ds_read_b128 a[{4*k}:{4*k+3}], v28 offset:{k*1024}",'mt') for k in range(6)]+[('wait','mt',None)]
    for nt in range(2):
        UC,US,UN=f"a[{4*nt}:{4*nt+3}]",f"a[{8+4*nt}:{11+4*nt}]",f"a[{16+4*nt}:{19+4*nt}]"
        cmb=((pa,pb,UN),(pg,pd,US),(pb,pa,US),(pd,pg,UN))
        for k,(x,y,T) in enumerate(cmb): it.append(f"v_mfma_f32_16x16x32_bf16 {vr(O+16*nt+4*k,4)}, {vr(x,4)}, {UC}, 0")
        for k,(x,y,T) in enumerate(cmb): it.append(f"v_mfma_f32_16x16x32_bf16 {vr(O+16*nt+4*k,4)}, {vr(y,4)}, {T}, {vr(O+16*nt+4*k,4)}")
    def k32(a):
        a("v_and_b32 v64, 15, v1"); a("v_cvt_f32_u32 v64, v64"); a(f"v_mul_f32 v64, {f2u(1/64)}, v64"); a("v_add_f32 v65, 0.25, v64")
        for nt in range(2):
            a(f"v_cos_f32 v66, v{64+nt}"); a(f"v_sin_f32 v67, v{64+nt}")
            for r in range(8): a(f"v_mul_f32 v{O+16*nt+r}, v66, v{O+16*nt+r}")
            for r in range(4): a(f"v_fma_f32 v{O+16*nt+r}, -v67, v{O+16*nt+8+r}, v{O+16*nt+r}"); a(f"v_fma_f32 v{O+16*nt+4+r}, v67, v{O+16*nt+12+r}, v{O+16*nt+4+r}")
    it.append(cond("k32",["s_cmp_eq_u32 s74, 32"],k32))
    for nt in range(2):
        b=O+16*nt
        for h,u in ((0,32+4*nt),(1,88+4*nt)):
            for c in range(4):
                n='-' if (h==1 and c>=2) else ''
                it.append(f"v_cvt_pk_bf16_f32 v{u+c}, {n}v{b+8*h+2*c}, {n}v{b+8*h+2*c+1}")
            it.append((f"buffer_store_dwordx4 {vr(u,4)}, v27, s[4:7], s{8+2*h+nt} offen offset:{64*h}{SC}",'E'))
    return it
def gen_main(a,dbg,fin,QW,AW,RF,AP,BP):
    T0=lambda blk,mt:S0+16*(2*blk+mt); T1=lambda blk,mt:S1+16*(2*blk+mt)
    probe(a,'s2')
    for u in range(P): aread(a,u)
    def g0c(a):
        for k in range(8): a(f"v_lshlrev_b32 v{128+k}, 16, v{128+k}")
        a("v_add_f32 v136, v128, v130"); a("v_sub_f32 v137, v129, v131"); a("v_add_f32 v138, v132, v134"); a("v_sub_f32 v139, v133, v135")
        a("v_add_f32 v140, v136, v138"); a("v_add_f32 v141, v137, v139"); a("v_sub_f32 v142, v136, v138"); a("v_sub_f32 v143, v137, v139")
        for r in range(140,144): a(f"v_mul_f32 v{r}, 0.25, v{r}")
        a(f"ds_write_b128 v28, v[140:143] offset:{G0-TRIG}")
    wpk=[('wait',None,('D',8,1)),cond("g0c",B0,g0c,"s_cbranch_scc1")]
    wst=[('wait',None,'W'),"v_add_u32 v62, 4096, v19"]+[f"ds_write_b128 v62, {vr(d,4)} offset:{k*1024}" for k,d in enumerate((32,36,88,92))]+["v_lshlrev_b32 v63, 3, v1","v_add_u32 v63, s96, v63"]
    wst+=[(f"ds_read_b64_tr_b16 {vr(d+2*mt,2)}, v63 offset:{4096+k*1024+mt*512}",'wt') for k,d in enumerate((32,36,88,92)) for mt in range(2)]
    variants(a,lambda w: job(a,0,9,lambda blk,mt: S1+16*((2*blk+mt-w)%4),lambda s:4*s+w,[(0.25,RF,QW),(RF,RF+0.25,[('grp',[('wait',None,'R'),setflag(0)])]),(8.75,9,wpk)]),"q1")
    probe(a,'s3')
    a("s_mov_b32 s20, 0x3f80"); a("s_mov_b32 s21, 0x3f800000")
    w1,w2,w3=q_reduce()
    gate=["v_and_b32 v64, 31, v1","v_lshlrev_b32 v64, 2, v64",f"v_add_u32 v64, {GATE}, v64","s_and_b32 s3, s38, 1","s_lshl_b32 s3, s3, 7","v_add_u32 v65, s3, v64",
          ("ds_read_b32 v3, v64",'gt'),("ds_read_b32 v31, v64 offset:128",'gt'),("ds_read_b32 v2, v65",'gt')]
    siluq=silu_items(S1,16,48,2)+[(f"ds_write_b128 v15, v[48:51]",'hq'),(f"ds_write_b128 v15, v[52:55] offset:2048",'hq')]
    pc_l=[("global_load_dword v68, v66, s[72:73] sc1",'pC')]
    W3=["s_cmp_eq_u32 s38, 3"]; MV=["s_cmp_eq_u32 s30, 1"]
    def seq(L_): return lambda a:[put(a,x) for x in L_]
    pollC=["v_and_b32 v66, 7, v1","v_lshlrev_b32 v66, 5, v66",cond("pc",W3,seq(pc_l),m=1)]
    chkC=[cond("cc",W3,seq([check("C",pc_l,["v_cmp_gt_u32 vcc, 32, v68","s_or_b64 vcc, vcc, vcc"],'pC')]))]
    pr_l=[("buffer_load_dword v69, v67, s[4:7], s22 offen sc1",'pR')]
    pollR=["v_and_b32 v67, 31, v1","v_lshlrev_b32 v67, 2, v67",f"s_mul_i32 s22, s75, {FS}",f"s_add_u32 s22, s22, {FR}",cond("pr",MV,seq(pr_l),m=1)]
    chkR=[cond("cr",MV,seq([check("R",pr_l,["v_cmp_eq_u32 vcc, 0, v69","s_or_b64 vcc, vcc, vcc"],'pR'),"s_mov_b32 m0, s96"]+
          [(f"buffer_load_dwordx4 v12, s[4:7], s31 offen offset:{q*1024} sc1 lds",'Rt') for q in range(4)]),m=1)]
    job(a,9,36,T0,lambda s:s,[(0.25,0.5,pollC),(1,5,[('bar',)]+w1+gate),(5.75,6,chkC),(1.25,11,AW),(6,10,w2),(10,14.5,w3),(14.5,17,wst),(AP[0],AP[0]+1.5,pollR),(14.5,AP[2],siluq),(AP[1],AP[1]+0.25,chkR),
        (AP[2],35.5,m_fwd()),(35.5,36,[('wait','hq',None),('bar',)])])
    probe(a,'s4')
    job(a,45,36,T1,lambda s:s,[(0.75,32,silu_strip(S0,0,'hA')),(18,24,m_inv()),(31.5,31.75,[('grp',[('wait',None,'E'),setflag(1)])]),
        (33,35.5,[hread(t,mt) for t in range(3) for mt in range(2)]),(35.5,36,[('wait',('hA',3),None),('bar',)])])
    probe(a,'s5')
    pe_l=[("buffer_load_dword v68, v66, s[4:7], s22 offen sc1",'pE'),("buffer_load_dword v69, v66, s[4:7], s23 offen sc1",'pE')]
    pollE=["v_min_u32 v66, 32, v1","v_lshlrev_b32 v66, 2, v66","s_lshr_b32 s24, s38, 1","s_lshl_b32 s3, s36, 1","s_add_u32 s24, s24, s3","s_add_u32 s25, s36, 12",
           ('grp',["s_and_b32 s3, s36, 6","s_cmp_eq_u32 s3, 4","s_cselect_b32 s25, s25, s24","s_cselect_b32 s26, 1, 0"]),
           f"s_mul_i32 s22, s24, {FS}",f"s_add_u32 s22, s22, {FE}",f"s_mul_i32 s23, s25, {FS}",f"s_add_u32 s23, s23, {FE}","v_mov_b32 v69, 1",cond("pe",["s_cmp_eq_u32 s26, 1"],seq(pe_l[1:])),pe_l[0]]
    edma=[check("E",pe_l,["v_cmp_eq_u32 vcc, 0, v68","v_cmp_eq_u32 s[22:23], 0, v69","s_or_b64 vcc, vcc, s[22:23]"][:1]+["v_cmp_eq_u32 s[28:29], 0, v69","s_or_b64 vcc, vcc, s[28:29]"],'pE'),
          "s_mul_i32 s3, s37, 18","s_add_u32 s22, s24, s3","s_lshl_b32 s22, s22, 12",f"s_add_u32 s22, s22, {WS_E}","s_add_u32 s23, s25, s3","s_lshl_b32 s23, s23, 12",f"s_add_u32 s23, s23, {WS_E}",
          "s_lshl_b32 s27, s38, 12","s_add_u32 s27, s27, 12288","s_and_b32 s28, s38, 1","s_lshl_b32 s28, s28, 12","s_add_u32 s28, s28, 28672"]
    edma2=[('grp',["s_mov_b32 m0, s27"]+[(f"buffer_load_dwordx4 v12, s[4:7], s22 offen offset:{q*1024} sc1 lds",'Et') for q in range(4)]),
           cond("ex",["s_cmp_eq_u32 s26, 1"],lambda a:[a("s_mov_b32 m0, s28")]+[a(f"buffer_load_dwordx4 v12, s[4:7], s23 offen offset:{q*1024} sc1 lds") for q in range(4)]),
           ("buffer_load_dword v69, v12, s[4:7], 0 offen",'Et')]
    hi=["v_and_b32 v64, 31, v1","s_and_b32 s3, s38, 1","s_lshl_b32 s3, s3, 5","v_add_u32 v64, s3, v64","v_lshlrev_b32 v65, 2, v64",f"v_add_u32 v65, {GATE+256}, v65",("ds_read_b32 v62, v65",'gm'),
        "v_lshlrev_b32 v64, 5, v64","v_add_u32 v64, s37, v64","v_cvt_f32_u32 v64, v64",f"v_mul_f32 v64, {f2u(1/2048)}, v64",f"v_mul_f32 v65, {f2u(16.0)}, v23","v_mul_f32 v65, v65, v64"]
    for s in range(4):
        for q in range(0,4,2):
            hi+=[f"v_fmamk_f32 v{56+e}, v64, {f2u(float(8*s+q+e))}, v65" for e in range(2)]
            for e in range(2): hi+=[f"v_cos_f32 v{58+2*e}, v{56+e}",f"v_sin_f32 v{59+2*e}, -v{56+e}"]
            hi+=[f"v_cvt_pk_bf16_f32 v{40+4*s+q+e}, v{58+2*e}, v{59+2*e}" for e in range(2)]
    hi+=[('grp',["v_lshlrev_b32 v56, 31, v1","v_or_b32 v56, 0x3f003f00, v56","v_cmp_gt_u32 vcc, 32, v1","v_cndmask_b32 v40, v40, v56, vcc"]),
         "v_lshrrev_b32 v63, 5, v1","v_lshlrev_b32 v63, 9, v63","v_bfe_u32 v56, v1, 2, 2","v_lshl_add_u32 v63, v56, 6, v63","v_bfe_u32 v56, v1, 4, 1","v_lshl_add_u32 v63, v56, 5, v63","v_and_b32 v56, 3, v1","v_lshl_add_u32 v63, v56, 3, v63"]
    UD,UA=S1+16,S1+32
    def unit(sb,slot_s):
        it=[f"v_add_u32 v57, {sb}, v63"]
        for s in range(4): it+=[(f"ds_read_b64_tr_b16 {vr(UA+4*s,2)}, v57 offset:{s*1024}",'ua'),(f"ds_read_b64_tr_b16 {vr(UA+4*s+2,2)}, v57 offset:{s*1024+256}",('ua',s))]
        for s in range(4): it+=[('wait',('ua',s),None),f"v_mfma_f32_32x32x16_bf16 {vr(UD,16)}, {vr(UA+4*s,4)}, {vr(40+4*s,4)}, {vr(UD,16) if s else 0}"]
        it+=slot_s
        it2=[f"v_mul_f32 v{UD+r}, v62, v{UD+r}" for r in range(16)]+[f"v_cvt_pk_bf16_f32 v{UD+r}, v{UD+2*r}, v{UD+2*r+1}" for r in range(8)]
        it2+=[(f"ds_write_b128 v56, {vr(UD,4)}",'uw'),(f"ds_write_b128 v56, {vr(UD+4,4)} offset:2048",'uw')]
        return it,it2
    u1,u1b=unit("s27",["s_lshr_b32 s3, s38, 1","s_lshl_b32 s3, s3, 12","s_and_b32 s53, s38, 1","s_lshl_b32 s53, s53, 10","s_add_u32 s3, s3, s53","v_add_u32 v56, s3, v12"])
    def u2(a):
        x,y=unit("s28",["s_lshl_b32 s3, s38, 10","s_add_u32 s3, s3, 8192","v_add_u32 v56, s3, v12"])
        a("s_waitcnt lgkmcnt(0)")
        for z in x+y: put(a,z)
        a("s_waitcnt lgkmcnt(0)")
    EXW=["s_lshr_b32 s3, s38, 1","s_sub_u32 s3, s26, s3","s_cmp_eq_u32 s3, 1"]
    J0=["s_cmp_eq_u32 s36, 0","s_cselect_b64 vcc, -1, 0"]
    gq=["s_lshl_b32 s43, s36, 2","s_add_u32 s43, s43, s38","s_lshl_b32 s43, s43, 3","s_add_u32 s43, s43, 574"]+gd_init("s97","s43")+gd_step(32,["s_cmp_eq_u32 s43, 574","s_cselect_b64 vcc, -1, 0"])
    def gqx(a):
        for z in ["s_lshl_b32 s43, s36, 1","s_add_u32 s43, s43, s38","s_lshl_b32 s43, s43, 3","s_add_u32 s43, s43, 766"]+gd_init("s97","s43")+gd_step(40): put(a,z)
    def gmain(scol): return ["s_lshl_b32 s43, s36, 5","s_add_u32 s43, s43, 574"]+gd_init(scol,"s43")+gd_step(GPK,J0)+uread(0,0)
    def ext(tile,scol,name,xtra=[]):
        for e in range(4): ext_step(a,tile,GPK+8*(e%2),e,e%2,(uread(e+1,(e+1)%2)+gd_step(GPK+8*((e+1)%2))+(xtra if e==0 else [])) if e<3 else [])
        def xt(a):
            for z in ["s_lshl_b32 s43, s36, 4","s_add_u32 s43, s43, 766"]+gd_init(scol,"s43")+uread(4,1)+gd_step(GPK): put(a,z)
            ext_step(a,tile,GPK,4,1,[]);
            for z in uread(5,0)+gd_step(GPK+8): put(a,z)
            ext_step(a,tile,GPK+8,5,0,[])
        put(a,cond(name,["s_cmp_eq_u32 s26, 1"],xt))
    def jit(s,blk):
        it=[]
        if s==17 and blk==0: it+=[('wait',('hB',3),None),('bar',)]
        if s+3<36: it.append(hread(s+3,blk))
        return it
    job(a,81,36,T0,lambda s:s,[(0.75,16.75,silu_strip(S1,32768,'hB')),(9,11,pollE),(16,17,edma),(17.75,18,edma2),(18.5,24,hi),(24,25,[('wait','gm','Et')]+gq[:8]),(25,27.5,u1+gq[8:40]),(27.5,30,gq[40:]),(28.5,31,u1b),
        (31,31.25,[cond("u2",EXW,u2,"s_cbranch_scc0"),cond("gqx",EXW,gqx,"s_cbranch_scc0")]),(31.5,35.75,gmain("s66")[:-2]),(34,34.25,[('wait',['uw',('B',35,1)],None),('bar',)]),(35.75,36,uread(0,0))],jit)
    ext(T0,"s66","xa")
    probe(a,'s6')
    def q2(w):
        T=lambda blk,mt: S1+16*((2*blk+mt-w)%4)
        job(a,117,9,T,lambda s:4*s+w,[(0.75,8.5,store_strip(S0,"s69",'stA')),(8,8.5,uread(w,0))])
        ext_step(a,T,32,w,0,[])
        if w<2:
            def xq(a):
                for z in uread(4+w,1): put(a,z)
                ext_step(a,T,40,4+w,1,[])
            put(a,cond("xq",["s_cmp_eq_u32 s26, 1"],xq))
    variants(a,q2,"q2")
    probe(a,'s7')
    w1,w2,w3=q_reduce()
    stq=[]
    for p in range(2):
        stq+=[f"v_cvt_pk_bf16_f32 v{88+4*p+c}, v{S1+8*p+2*c}, v{S1+8*p+2*c+1}" for c in range(4)]
        stq.append((f"buffer_store_dwordx4 {vr(88+4*p,4)}, v30, s[4:7], s71 offen offset:{p*256}{SC}",'stQ'))
    fa=["v_and_b32 v50, 7, v1","v_lshlrev_b32 v50, 2, v50",f"s_mul_i32 s22, s37, {12*FS}",f"s_mul_i32 s3, s38, {FS}","s_add_u32 s23, s22, s3",f"s_add_u32 s23, s23, {FF}",
        "s_lshl_b32 s3, s37, 3","s_add_u32 s3, s3, s36","s_mul_i32 s24, s3, 73728","s_lshl_b32 s3, s36, 8","s_add_u32 s3, s3, s37","s_mul_i32 s25, s3, 1152",
        "v_mul_u32_u24 v51, 9216, v50","v_lshrrev_b32 v52, 3, v1","v_lshl_add_u32 v51, v52, 4, v51"]
    fa+=["s_and_b32 s3, s38, 2","s_lshr_b32 s43, s36, 2","s_add_u32 s3, s3, s43",f"s_mul_i32 s3, s3, {FS}","s_add_u32 s22, s22, s3",f"s_add_u32 s22, s22, {FF+4*FS}",
         "s_lshl_b32 s3, s66, 3","s_add_u32 s27, s24, s3","s_lshl_b32 s3, s97, 3","s_add_u32 s28, s24, s3","s_lshl_b32 s3, s38, 8","s_add_u32 s28, s28, s3"]
    pa_l=[("buffer_load_dword v53, v50, s[4:7], s23 offen sc1",'pA'),("buffer_load_dword v54, v50, s[4:7], s22 offen sc1",'pA')]
    LA=S1+16
    def ul(dst,sb,tag): return [(f"buffer_load_dwordx4 {vr(dst+4*jp,4)}, v{12 if jp<4 else 55}, s[4:7], {sb} offen{SC}",(tag,jp)) if 0 else ('grp',[(f"buffer_load_dwordx4 {vr(dst+4*jp,4)}, v12, s[4:7], {sb} offen{SC}",(tag,jp)),f"s_add_u32 {sb}, {sb}, 9216"]) for jp in range(8)]
    chkA=[check("A",pa_l,["v_cmp_eq_u32 vcc, 0, v53","v_cmp_eq_u32 s[30:31], 0, v54","s_or_b64 vcc, vcc, s[30:31]"],'pA')]+ul(LA,"s27",'uA')
    ldQ=[('grp',["s_mov_b64 exec, 0xffff"]+ul(224,"s28",'uQ')+["s_mov_b64 exec, -1"])]
    wins=[(0.25,3,w1),(4,7.5,w2),(BP[0],BP[0]+0.25,[('grp',[('wait',None,'stA'),setflag(2)])]),(8,12.5,w3),(12.5,14,stq),(BP[1],BP[1]+0.25,[('grp',[('wait',None,'stQ'),setflag(3)])]),(BP[4],36,gmain("s67"))]
    wins+=[(15,20,fa),(BP[2],BP[2]+0.5,pa_l),(BP[3],36,chkA)]
    job(a,126,36,T0,lambda s:s,wins)
    ext(T0,"s67","xb",ldQ)
    probe(a,'s8')
    for x in store_strip(S0,"s70",'stB'): put(a,x)
    for x in unit_sum(LA,40,'uA')+["s_add_u32 s3, s25, s66",("buffer_store_dwordx4 v[40:43], v51, s[32:35], s3 offen",'o')]: put(a,x)
    probe(a,'f0')
    for x in unit_sum(224,56,'uQ'): put(a,x)
    a("s_add_u32 s3, s25, s97"); a("s_lshl_b32 s43, s38, 5"); a("s_add_u32 s3, s3, s43"); a("s_mov_b64 exec, 0xffff")
    a("buffer_store_dwordx4 v[56:59], v51, s[32:35], s3 offen",'o'); a("s_mov_b64 exec, -1")
    a(f"s_add_u32 s23, s23, {8*FS}"); a("s_lshl_b32 s3, s67, 3"); a("s_add_u32 s27, s24, s3")
    probe(a,'f1')
    a.wait(v='stB'); put(a,setflag(4))
    probe(a,'f2')
    pb_l=[("buffer_load_dword v53, v50, s[4:7], s23 offen sc1",'pB')]
    put(a,pb_l[0])
    put(a,check("B",pb_l,["v_cmp_eq_u32 vcc, 0, v53","s_or_b64 vcc, vcc, vcc"],'pB'))
    probe(a,'s9')
    for x in ul(S1,"s27",'uB'): put(a,x)
    for x in unit_sum(S1,64,'uB'): put(a,x)
    a("s_add_u32 s3, s25, s67"); a("buffer_store_dwordx4 v[64:67], v51, s[32:35], s3 offen",'o')
    if dbg:
        a("s_waitcnt vmcnt(0)"); a("s_and_b32 s5, s5, 0xffff")
        dump_stamps(a,dbg,0,4)
```

```python
from common import *
KWS={}
RING=73728; NSLOT=10; D=9; P=2
PX=24576
S0,S1=96,160
AB=72
TRIG=155648; G0=TRIG+6144; GATE=TRIG+7168; LDS_TOTAL=163840
WS_X=0; WS_R=0x1200000; WS_E=0x1480000; FS=4352; FR=0x1800000; FE=FR+0x14000; FF=FR+0x28000
OOB=0x4000000
SC=" sc1"
WP=[32+e for e in range(8)]; W2P=[88+e for e in range(8)]
def XB(t,mt):
    i=8*t+4*mt
    return f"a[{i}:{i+3}]" if i<256 else vr(224+i-256,4)
LOG2E=f2u(-1.4426950408889634)
def silu_items(base,n,packdst,c,tb=40):
    it=[]
    for g in range(0,n,4):
        T=[tb+(g//4%2)*4+k for k in range(4)]
        for k in range(4): it.append(f"v_mul_f32 v{T[k]}, {LOG2E}, v{base+g+k}")
        for k in range(4): it.append(f"v_exp_f32 v{T[k]}, v{T[k]}")
        for k in range(4): it.append(f"v_fma_f32 v{T[k]}, v{T[k]}, v{c}, v{c}")
        for k in range(4): it.append(f"v_rcp_f32 v{T[k]}, v{T[k]}")
        for k in range(4): it.append(f"v_mul_f32 v{base+g+k}, v{base+g+k}, v{T[k]}")
        it.append(f"v_cvt_pk_bf16_f32 v{packdst+g//2}, v{base+g}, v{base+g+1}")
        it.append(f"v_cvt_pk_bf16_f32 v{packdst+g//2+1}, v{base+g+2}, v{base+g+3}")
    return it
def silu_strip(S,imm0,tag,alt=0):
    it=[]
    for blk in range(2):
        for mt in range(2):
            ti=blk*2+mt; pk=48+8*(ti%2); tb=40
            if alt and ti>=2: pk=S+8+8*(ti%2); tb=S
            if ti>=2: it.append(('wait',(tag,ti-2),None))
            x=silu_items(S+16*ti,16,pk,3 if mt==0 else 31,tb)
            it+=x[:44]+[(f"ds_write_b128 v14, {vr(pk,4)} offset:{imm0+(2*blk)*2048+mt*1024}",(tag,'h'))]
            it+=x[44:]+[(f"ds_write_b128 v14, {vr(pk+4,4)} offset:{imm0+(2*blk+1)*2048+mt*1024}",(tag,ti))]
    return it
def store_strip(S,sreg,tag,fix=0):
    it=[]; k=0
    for blk in range(2):
        for p in range(2):
            for mt in range(2):
                u=88+4*(k%2); k+=1; b=S+16*(2*blk+mt)+8*p
                for c in range(4): it.append(f"v_cvt_pk_bf16_f32 v{u+c}, v{b+2*c}, v{b+2*c+1}")
                if fix: it.insert(len(it)-1,f"v_min_u32 v{u}, -2, v{u}")
                it.append((f"buffer_store_dwordx4 {vr(u,4)}, v{30 if mt==0 else 29}, s[4:7], {sreg} offen offset:{(2*blk+p)*256}{SC}{KWS.get('NT','') if tag in KWS.get('NTT',()) else ''}",tag))
    return it
STEPS=[]
for ph in range(2):
    jobs=[('Q',9),('A',36),('B',36)] if ph==0 else [('A',36),('Q',9),('B',36)]
    for nm,n in jobs:
        for k in range(n): STEPS.append((ph,nm,k))
COL={(0,'A'):63,(0,'B'):64,(0,'Q'):65,(1,'A'):66,(1,'B'):67,(1,'Q'):68}
def perm(k):
    if k<20 or not KWS.get('PM',0): return k
    g=k-20; return 20+4*((g%8)//2)+2*(g//8)+g%2
def dma_items(n,piece):
    if n>=len(STEPS): return []
    ph,nm,k=STEPS[n]; pitch=9216 if ph==0 else 1152; rb=44 if ph==0 else 54
    it=[]
    if piece==0:
        it.append(f"s_add_u32 m0, s41, {(n%NSLOT)*2048}")
        if nm=='Q': it.append(f"s_add_u32 s42, s{rb+k}, s{COL[(ph,nm)]}")
        elif ph==1 and nm=='A' and k>=20 and KWS.get('PM',0) and k%2==0:
            t=perm(k); it.append(f"s_add_u32 s42, s{rb+t//4}, s{COL[(ph,nm)]}")
            if t%4: it.append(f"s_add_u32 s42, s42, {16*pitch*(t%4)}")
        elif k%4==0: it.append(f"s_add_u32 s42, s{rb+k//4}, s{COL[(ph,nm)]}")
        else: it.append(f"s_add_u32 s42, s42, {16*pitch}")
    it.append((f"buffer_load_dwordx4 v{4+2*ph+piece}, s[{12+4*ph}:{15+4*ph}], s42 offen{' offset:1024' if piece else ''} lds",('D',n,piece)))
    return it
def put(a,x):
    if isinstance(x,str): a(x)
    elif x[0]=='wait': a.wait(l=x[1],v=x[2])
    elif x[0]=='bar': a("s_barrier")
    elif x[0]=='grp':
        for y in x[1]: put(a,y)
    elif x[0]=='call': x[1](a)
    else: a(x[0],x[1])
def aread(a,u):
    n=u//2
    if n>=len(STEPS): return
    ph=STEPS[n][0]; blk=u%2
    if blk==0: a.wait(v=('D',n,1))
    b=AB+4*(u%4); o=(n%NSLOT)*2048
    a(f"ds_read_b64_tr_b16 {vr(b,2)}, v{8+2*ph+blk} offset:{o}",('Ax',u))
    a(f"ds_read_b64_tr_b16 {vr(b+2,2)}, v{8+2*ph+blk} offset:{o+(512 if ph==0 else 1024)}",('A',u))
def hread(t,mt):
    o=t*2048+mt*1024
    return (f"ds_read_b128 {XB(t,mt)}, v{12 if o<32768 else 13} offset:{o if o<32768 else o-32768}",('B',t,mt))
WGT=[1,0,0]
def wt(x):
    if isinstance(x,str):
        if x.startswith("s_"): return 0.05
        if x.startswith(("v_exp","v_rcp","v_cos","v_sin","v_rsq","v_log")): return 2.0
        if x.startswith("v_mfma"): return 3.0
        return 1.0
    if x[0] in ('wait','bar','call'): return 0.05
    if x[0]=='grp': return sum(wt(y) for y in x[1])
    return wt(x[0])
def spread(ns,wins,base=None):
    gaps=[[] for _ in range(ns*4)]
    if not WGT[0] or base is None:
        for s0,s1,items in wins:
            g0,g1=int(s0*4),int(s1*4); m=g1-g0
            for k,x in enumerate(items): gaps[g0+(k*m)//len(items)].append(x)
        return gaps
    load=[base[g%4] for g in range(ns*4)]
    for s0,s1,items in sorted(wins,key=lambda w:w[1]-w[0]):
        g0,g1=int(s0*4),int(s1*4); W=sum(wt(x) for x in items)
        lo,hi=0.0,1000.0
        for _ in range(40):
            mid=(lo+hi)/2
            if sum(max(0,mid-load[g]) for g in range(g0,g1))>=W: hi=mid
            else: lo=mid
        cap=[max(0,hi-load[g]) for g in range(g0,g1)]
        g=0; cc=cap[0]; cw=0.0
        for x in items:
            w=wt(x)
            while g<len(cap)-1 and cw+w/2>cc+1e-9: g+=1; cc+=cap[g]
            gaps[g0+g].append(x); load[g0+g]+=w; cw+=w
    return gaps
PROBE={}
def probe(a,nm):
    if nm in PROBE: stamp(a,PROBE[nm],1)
def job(a,n0,ns,tile,slot,wins,jit=None):
    gaps=spread(ns,wins,[2,2,2,2] if jit else [2,1,2,1])
    for g,L in enumerate(gaps):
        if g%4 in (1,2): assert "m0" not in repr(L), (n0,g)
    for s in range(ns):
        n=n0+s; t=slot(s); probe(a,'n%d'%n)
        for blk in range(2):
            u=2*n+blk; fb=AB+4*(u%4)
            a.wait(l=[('A',u),('B',t,0),('B',t,1)])
            for mt in range(2):
                d=vr(tile(blk,mt),16)
                a(f"v_mfma_f32_32x32x16_bf16 {d}, {vr(fb,4)}, {XB(t,mt)}, {d if s>0 else 0}")
                if mt==0: aread(a,u+P)
                else:
                    for x in dma_items(n+D,blk): put(a,x)
                    if jit:
                        for x in jit(s,blk): put(a,x)
                for x in gaps[s*4+blk*2+mt]: put(a,x)
FCH=S1+48; GPK=S1
def uread(e,buf):
    return [(f"ds_read_b128 {vr(56+8*buf+4*mt,4)}, v12 offset:{e*2048+mt*1024}",('U',e,mt)) for mt in range(2)]
def gd_init(scol,sk,f=FCH,c2=20):
    it=[f"s_lshr_b32 s3, {scol}, 1","v_add_u32 v64, s3, v22","v_add_u32 v65, 32, v64"]
    for blk in range(2):
        d=64+blk
        it.append(f"v_mul_u32_u24 v66, {sk}, v{d}"); it.append(f"v_add_u32 v67, v66, v{d}")
        x=cos_mod(None,f+8*blk+6,66,68,23); y=cos_mod(None,f+8*blk+7,67,69,23); z=cos_mod(None,c2+blk,d,70)
        for q in range(6): it+= [x[q],y[q],z[q]]
    it+=[f"v_add_f32 v{c2}, v{c2}, v{c2}",f"v_add_f32 v{c2+1}, v{c2+1}, v{c2+1}"]
    return it
def gd_step(pk,patch=None,f=FCH,c2=20):
    it=[]
    for jj in range(8):
        for blk in range(2):
            b=f+8*blk; it.append(f"v_fma_f32 v{b+jj}, v{c2+blk}, v{b+(jj-1)%8}, -v{b+(jj-2)%8}")
        if jj%2==1:
            for blk in range(2):
                b=f+8*blk
                if jj==1 and patch:
                    it.append(('grp',patch+[f"v_cndmask_b32 v71, v{b}, v24, vcc",f"v_cvt_pk_bf16_f32 v{pk+4*blk}, v71, v{b+1}"]))
                else: it.append(f"v_cvt_pk_bf16_f32 v{pk+4*blk+jj//2}, v{b+jj-1}, v{b+jj}")
    return it
def ext_step(a,tile,pk,e,buf,fill):
    gaps=spread(1,[(0,1,fill)]) if fill else [[]]*4
    a.wait(l=[('U',e,0),('U',e,1)])
    for blk in range(2):
        for mt in range(2):
            d=vr(tile(blk,mt),16)
            a(f"v_mfma_f32_32x32x16_bf16 {d}, {vr(pk+4*blk,4)}, {vr(56+8*buf+4*mt,4)}, {d}")
            for x in gaps[blk*2+mt]: put(a,x)
def setflag(k): return ('grp',[f"s_mov_b64 exec, {1<<k}",(f"buffer_store_dword v25, v25, s[4:7], 0 offen{SC}",'fl'),"s_mov_b64 exec, -1"])
TAIL=[]
def check(name,loads,cmps,tag):
    def f(a):
        a.wait(v=tag)
        for x in cmps: a(x)
        a(f"s_cbranch_scc1 Lsp_{name}"); a(f"Lbk_{name}:")
        L=[f"Lsp_{name}:","s_mov_b32 s53, 0",f"Lsl_{name}:"]+[x[0] for x in loads]+["s_waitcnt vmcnt(0)","s_add_u32 s53, s53, 1","s_cmp_ge_u32 s53, 20000",f"s_cbranch_scc1 Lbk_{name}"]+cmps+[f"s_cbranch_scc1 Lsl_{name}","s_nop 4",f"s_branch Lbk_{name}"]
        TAIL.extend(L)
    return ('call',f)
CNT=[0]
def cond(name,cmpi,body,brop="s_cbranch_scc0",m=0):
    def f(a):
        CNT[0]+=1; lab=f"Lsk_{name}_{CNT[0]}"
        probe(a,name+'0')
        for x in cmpi: a(x)
        a(f"{brop} {lab}")
        st=a.fork(); body(a)
        e=a.fork(); a(f"{lab}:")
        if m: a.joinm([st,e])
        else: a.join([st,(e[0],e[1],st[2],st[3])])
        probe(a,name+'1')
    return ('call',f)
def unit_loads(dst,vo,sbase,tag,n=8):
    it=[f"s_mov_b32 s43, {sbase}"]
    for jp in range(n):
        it.append((f"buffer_load_dwordx4 {vr(dst+4*jp,4)}, v{vo}, s[4:7], s43 offen{SC}",(tag,jp)))
        if jp<n-1: it.append("s_add_u32 s43, s43, 9216")
    return it
def unit_sum(src,acc,tag):
    it=[]
    for jp in range(8):
        it.append(('wait',None,(tag,jp)))
        for c in range(4):
            it.append(f"v_dot2_f32_bf16 v{acc+2*c}, v{src+4*jp+c}, s20, {'v%d'%(acc+2*c) if jp else 0}")
            it.append(f"v_dot2_f32_bf16 v{acc+2*c+1}, v{src+4*jp+c}, s21, {'v%d'%(acc+2*c+1) if jp else 0}")
    for c in range(4): it.append(f"v_cvt_pk_bf16_f32 v{acc+c}, v{acc+2*c}, v{acc+2*c+1}")
    return it
def gen_kf(a,K,dbg=0,G=2,TW=(2.5,16,8,17,7),BT=(22,32),GW=(6,6,7,16.5,0,6,15,10,7),BG=(4,16,30),XB2=1,RF=6.75,AP=(14,18.75,25),BP=(8,19,27.5,32,28),PB=0,fin=1,PR=None,NOT1=0,WG=1,**KW):
    TAIL.clear(); PROBE.clear(); WGT[0]=WG; global P; P=KW.get('P',2); KWS.clear(); KWS.update(KW)
    if dbg: PROBE.update({n:k for k,n in enumerate(PR.split('.') if PR else ['s%d'%k for k in range(10)])})
    khead(a,K)
    a("s_cmp_ge_u32 s2, 256"); a("s_cbranch_scc1 Lkf_end"); stamp(a,11,dbg)
    a("s_load_dwordx8 s[76:83], s[0:1], 0"); a("s_load_dwordx8 s[84:91], s[0:1], 32"); a("s_load_dwordx4 s[92:95], s[0:1], 64")
    a("s_lshr_b32 s43, s2, 3")
    code_prefetch(a,K,"Lkf_last","s43",39,40,0,s0=66)
    a("v_and_b32 v1, 63, v0"); a("v_lshrrev_b32 v2, 6, v0")
    lg={1:0,2:1,4:2,8:3}[G]
    a(f"s_bfe_u32 s37, s2, {(lg<<16)|(3-lg)}"); a(f"s_lshl_b32 s37, s37, {5-lg}"); a(f"s_lshr_b32 s3, s2, {3+lg}"); a("s_add_u32 s37, s37, s3")
    a("v_readfirstlane_b32 s38, v2")
    tile_voff(a,28,29,1,2,32*1152,40,41)
    KR=KW.get('KR',9)
    if KR==9:
        a("s_mul_i32 s44, s37, 5"); a("s_lshr_b32 s44, s44, 2"); a("s_mul_i32 s3, s44, 57"); a("s_lshr_b32 s3, s3, 9"); a("s_mul_i32 s3, s3, 9"); a("s_sub_u32 s44, s44, s3")
    elif KR==0: a("s_mov_b32 s44, 0")
    elif KR==2: a("s_and_b32 s44, s37, 1"); a("s_lshl_b32 s44, s44, 2")
    elif KR==16: a("s_lshr_b32 s44, s37, 4"); a("s_lshl_b32 s44, s44, 2")
    a("s_mul_i32 s3, s37, 1152"); a("s_lshl_b32 s43, s38, 11"); a("s_mov_b32 s10, 2359296"); a("s_mov_b32 s11, 0x20000")
    for p in range(9):
        if p: a(f"s_add_u32 s{44+p}, s{43+p}, 1"); a(f"s_cmp_eq_u32 s{44+p}, 9"); a(f"s_cselect_b32 s{44+p}, 0, s{44+p}")
        a(f"s_lshl_b32 s{54+p}, s{44+p}, 7"); a(f"s_add_u32 s42, s{54+p}, s3")
        if p==0: a("s_mov_b32 m0, s43"); a("s_waitcnt lgkmcnt(0)"); a("s_mov_b32 s8, s76"); a("s_and_b32 s9, s77, 0xffff")
        else: a(f"s_add_u32 m0, s43, {p*8192}")
        a(f"buffer_load_dwordx4 v28, s[8:11], s42 offen lds",('x',p))
        a(f"buffer_load_dwordx4 v29, s[8:11], s42 offen offset:1024 lds",('x',p))
    srd(a,4,94,0x2000000); a("s_mov_b64 s[72:73], s[92:93]")
    for d,b in ((12,84),(16,86),(20,78),(24,80),(32,90),(68,88)): a(f"s_mov_b64 s[{d}:{d+1}], s[{b}:{b+1}]")
    probe(a,'i0')
    def L(x): return [y.strip() for y in x.split(";") if y.strip()]
    def Gp(x): return ('grp',L(x))
    def fin_srd(d,size,off=None):
        return (f"s_add_u32 s{d}, s{d}, {off}; s_addc_u32 s{d+1}, s{d+1}, 0;" if off else "")+f"s_and_b32 s{d+1}, s{d+1}, 0xffff; s_mov_b32 s{d+2}, {size}; s_mov_b32 s{d+3}, 0x20000;"
    def S(dst,x,t="s3"): return f"s_add_u32 {dst}, {x}, s40; s_sub_u32 {t}, {dst}, 9; s_cmp_ge_u32 {dst}, 9; s_cselect_b32 {dst}, {t}, {dst};"
    XA=96
    PRE=L(f"""s_and_b32 s36, s2, {8//G-1}; s_lshl_b32 s36, s36, {lg}; s_bfe_u32 s3, s2, {(lg<<16)|3}; s_add_u32 s36, s36, s3;
      s_lshl_b32 s28, s36, 1; s_add_u32 s28, s28, s38; s_cmp_lt_u32 s38, 2; s_cselect_b32 s29, 1, 0;
      s_and_b32 s3, s36, 6; s_lshl_b32 s3, s3, 2; s_add_u32 s3, s3, s38; s_cmp_eq_u32 s3, 10;
      s_cselect_b32 s29, 1, s29; s_add_u32 s3, s36, 14; s_cmp_eq_u32 s38, 2; s_cselect_b32 s28, s3, s28;
      v_lshrrev_b32 v40, 5, v1; v_bfe_u32 v41, v1, 1, 3; v_xor_b32 v41, v41, v40; v_and_b32 v42, 31, v1; v_lshlrev_b32 v42, 7, v42;
      s_mov_b32 s100, 7456541; s_movk_i32 s101, 576""")
    for k in range(4): PRE+=L(f"v_xor_b32 v43, {2*k}, v41; v_lshl_add_u32 v{XA+k}, v43, 4, v42")
    IDS=L(f"""s_and_b32 s3, s38, 1; s_lshl_b32 s75, s36, 1; s_add_u32 s75, s75, s3; s_mov_b32 s74, s37; s_lshr_b32 s30, s38, 1;
      s_and_b32 s3, s36, 6; s_lshl_b32 s3, s3, 2; s_add_u32 s3, s3, s38; s_add_u32 s66, s36, 10; s_cmp_eq_u32 s3, 24;
      s_cselect_b32 s75, s66, s75; s_cselect_b32 s30, 1, s30;
      s_lshl_b32 s3, s36, 2; s_add_u32 s3, s3, s38; s_cmp_eq_u32 s3, 5; s_cselect_b32 s3, s37, 99; s_cmp_lt_u32 s3, 18;
      s_cselect_b32 s75, s37, s75; s_cselect_b32 s74, 32, s74; s_cselect_b32 s30, 1, s30;
      """)
    FLG=[Gp(f"v_mov_b32 v25, {OOB}; s_mul_i32 s3, s28, {FS//4}; s_add_u32 s3, s3, s37; s_lshl_b32 s3, s3, 2"),Gp(f"s_add_u32 s3, s3, {FR}; s_cmp_eq_u32 s29, 1; s_cselect_b32 s3, s3, {OOB}; v_writelane_b32 v25, s3, 0"),
      Gp(f"s_mul_i32 s3, s75, {FS//4}; s_add_u32 s3, s3, s74; s_lshl_b32 s3, s3, 2"),Gp(f"s_add_u32 s3, s3, {FE}; s_cmp_eq_u32 s30, 1; s_cselect_b32 s3, s3, {OOB}; v_writelane_b32 v25, s3, 1")]
    FLG+=L(f"""s_mul_i32 s3, s37, 12; s_add_u32 s3, s3, s38; s_mul_i32 s3, s3, {FS//4}; s_add_u32 s3, s3, s36; s_lshl_b32 s3, s3, 2; s_add_u32 s3, s3, {FF};
      v_writelane_b32 v25, s3, 2; s_add_u32 s3, s3, {4*FS}; v_writelane_b32 v25, s3, 3; s_add_u32 s3, s3, {4*FS}; v_writelane_b32 v25, s3, 4""")
    ZF=L(f"""s_mul_i32 s3, s37, {3*FS}; s_add_u32 s3, s3, s36; s_lshl_b32 s3, s3, 2; s_add_u32 s3, s3, {FF}; v_mul_u32_u24 v42, {FS}, v1; v_add_u32 v42, s3, v42; v_mov_b32 v43, 0;
      s_mul_i32 s67, s36, {FS//2}; s_add_u32 s3, s67, s37; s_lshl_b32 s3, s3, 2; s_add_u32 s3, s3, {FR}; v_writelane_b32 v42, s3, 12; s_add_u32 s3, s3, {FS}; v_writelane_b32 v42, s3, 13;
      s_add_u32 s3, s3, {FE-FR}; v_writelane_b32 v42, s3, 16; s_sub_u32 s3, s3, {FS}; v_writelane_b32 v42, s3, 15;
      s_lshr_b32 s67, s67, 1; s_add_u32 s67, s67, s37; s_lshl_b32 s67, s67, 2;
      s_add_u32 s3, s67, {FR+14*FS}; s_and_b32 s66, s36, 6; s_cmp_eq_u32 s66, 2; s_cselect_b32 s3, s3, {OOB}; v_writelane_b32 v42, s3, 14;
      s_add_u32 s3, s67, {FE+10*FS}; s_cmp_eq_u32 s66, 6; s_cselect_b32 s3, s3, {OOB}; v_writelane_b32 v42, s3, 17;
      s_mul_i32 s3, s37, {FS}; s_add_u32 s3, s3, {FE+128}; s_cmp_eq_u32 s36, 1; s_cselect_b32 s66, s37, 99; s_cmp_lt_u32 s66, 18; s_cselect_b32 s3, s3, {OOB}; v_writelane_b32 v42, s3, 18""")
    ZF+=[('grp',["s_mov_b64 exec, 0x7ffff",(f"buffer_store_dword v43, v42, s[4:7], 0 offen{SC}",'z'),"s_mov_b64 exec, -1"])]
    R9="s_mul_i32 s40, s37, 57; s_lshr_b32 s40, s40, 9; s_mul_i32 s40, s40, 9; s_sub_u32 s40, s37, s40;"
    ROT=KWS.get('ROT',9); RO2=KWS.get('RO2',0)
    RX={9:R9,1:"s_mov_b32 s40, 0;",2:"s_and_b32 s40, s37, 1; s_lshl_b32 s40, s40, 2;",3:"s_mul_i32 s40, s37, 43; s_lshr_b32 s40, s40, 7; s_mul_i32 s40, s40, 3; s_sub_u32 s40, s37, s40; s_mul_i32 s40, s40, 3;"}[ROT]
    RING_=L(f"""{RX}
      s_mul_i32 s41, s38, {NSLOT*2048}; s_add_u32 s41, s41, {RING}; s_mul_i32 s3, s36, 1152; {fin_srd(12,0,'s3')} s_sub_u32 s14, 5308416, s3;"""
      +"".join(f"s_mul_i32 s{44+p}, s{44+p}, {64*9216};" for p in range(9))
      +f"""{S('s65',8)} s_lshl_b32 s97, s65, 7; s_mul_i32 s3, s38, {16*9216}; s_add_u32 s65, s97, s3;
      s_lshl_b32 s66, s38, 1; {S('s63','s66')} s_add_u32 s66, s66, 1; {S('s64','s66')} s_lshl_b32 s63, s63, 7; s_lshl_b32 s64, s64, 7;
      v_lshrrev_b32 v69, 3, v1; v_bfe_u32 v70, v1, 4, 1; v_lshlrev_b32 v70, 2, v70; v_xor_b32 v70, v70, v1; v_and_b32 v70, 7, v70; v_lshlrev_b32 v70, 4, v70;
      v_mul_u32_u24 v4, 9216, v69; v_add_u32 v4, v4, v70; v_add_u32 v5, {8*9216-1024}, v4;
      v_mul_u32_u24 v6, 1152, v69; v_add_u32 v6, v6, v70; v_add_u32 v7, {8*1152-1024}, v6""")
    def AFR(t): return L(f"""v_bfe_u32 v{t}, v1, 2, 2; v_lshlrev_b32 v{t+1}, 7, v{t}; v_lshrrev_b32 v{t}, 1, v{t}; v_lshl_add_u32 v{t+1}, v{t}, 6, v{t+1};
      v_bfe_u32 v{t}, v1, 4, 1; v_lshl_add_u32 v{t+1}, v{t}, 5, v{t+1}; v_add_u32 v{t+1}, s41, v{t+1};
      v_and_b32 v8, 3, v1; v_lshl_add_u32 v8, v8, 3, v{t+1};
      v_and_b32 v{t}, 1, v1; v_lshl_add_u32 v{t+1}, v{t}, 4, v{t+1}; v_bfe_u32 v{t}, v1, 1, 1; v_lshl_add_u32 v{t+1}, v{t}, 3, v{t+1};
      v_lshrrev_b32 v{t}, 5, v1; v_lshl_add_u32 v8, v{t}, 10, v8; v_xor_b32 v9, 64, v8; v_lshl_add_u32 v10, v{t}, 9, v{t+1}; v_xor_b32 v11, 64, v10;
      v_lshlrev_b32 v12, 4, v1; v_add_u32 v28, {TRIG}, v12""")+[f"v_add_u32 v{XA+4+k}, 0x10000, v{XA+k}" for k in range(4)]
    WSRD=L(fin_srd(20,1183744)+fin_srd(24,1183744))
    QW=[Gp("s_lshl_b32 s3, s38, 13; s_add_u32 s3, s3, 8192; v_add_u32 v14, s3, v12; v_add_u32 v13, 32768, v12"),
        Gp("s_lshr_b32 s3, s38, 1; s_lshl_b32 s3, s3, 12; s_and_b32 s43, s38, 1"),Gp("s_lshl_b32 s43, s43, 10; s_add_u32 s3, s3, s43; v_add_u32 v15, s3, v12")]
    for k in range(1,4): QW+=[Gp(f"s_add_u32 s3, s38, {k}; s_and_b32 s3, s3, 3; s_mul_i32 s3, s3, 12288"),Gp(f"s_add_u32 s3, s3, {PX+(k-1)*4096}; v_add_u32 v{15+k}, s3, v12")]
    QW+=L(f"""s_mul_i32 s96, s38, 12288; s_add_u32 s96, s96, {PX}; v_add_u32 v19, s96, v12;
      v_lshrrev_b32 v41, 2, v1; v_lshlrev_b32 v26, 7, v41; v_and_b32 v41, 1, v1; v_lshl_add_u32 v26, v41, 4, v26; v_bfe_u32 v41, v1, 1, 1; v_lshl_add_u32 v26, v41, 3, v26; v_add_u32 v26, s96, v26;
      s_mul_i32 s31, s74, 18; s_add_u32 s31, s31, s75; s_lshl_b32 s31, s31, 12; s_add_u32 s31, s31, {WS_R}""")
    QW=FLG+QW
    AW=[Gp("s_lshl_b32 s8, s74, 7; s_cmp_eq_u32 s74, 32; s_cselect_b32 s8, 64, s8")]+L(f"s_lshl_b32 s26, s75, 12; s_add_u32 s8, s8, s26; s_add_u32 s8, s8, {WS_E}")
    AW+=[Gp(f"s_cmp_eq_u32 s30, 1; s_cselect_b32 s8, s8, {OOB}"),"s_add_u32 s9, s8, 1179648","s_and_b32 s26, s74, 31",Gp(f"s_cmp_eq_u32 s26, 0; s_cselect_b32 s10, {OOB}, s8"),"s_add_u32 s11, s10, 1179648"]
    CB=[]
    for cb in range(9):
        x = 8 if cb==0 else (2*(cb-1) if cb<=4 else 2*(cb-5)+1)
        CB+=[Gp(S(f"s{54+cb}",x,"s26")),f"s_mul_i32 s{54+cb}, s{54+cb}, {64*1152}"]
    if RO2:
        AW+=CB+L(R9)+([Gp(f's_and_b32 s26, s37, 15; s_cmp_ge_u32 s26, 9; s_addc_u32 s40, s40, 0')] if RO2==2 else [])+[Gp(S('s97',8,'s26')),"s_lshl_b32 s97, s97, 7","s_lshl_b32 s27, s38, 1",Gp(S('s66','s27','s26')),"s_add_u32 s27, s27, 1",Gp(S('s67','s27','s26')),"s_lshl_b32 s66, s66, 7","s_lshl_b32 s67, s67, 7"]
        CB=[]
    else: AW+=L("s_mov_b32 s66, s63; s_mov_b32 s67, s64")
    AW+=L(f"""s_mul_i32 s26, s37, 589824; s_mul_i32 s27, s36, 9216; s_add_u32 s27, s27, s26;
      s_lshl_b32 s69, s66, 3; s_add_u32 s69, s69, s27; s_lshl_b32 s70, s67, 3; s_add_u32 s70, s70, s27;
      s_lshl_b32 s71, s97, 3; s_add_u32 s71, s71, s27; s_lshr_b32 s26, s38, 1; s_lshl_b32 s26, s26, 9; s_add_u32 s71, s71, s26;
      s_and_b32 s26, s38, 1; s_mul_i32 s26, s26, 294912; s_add_u32 s71, s71, s26; s_mul_i32 s26, s38, {16*1152}; s_add_u32 s68, s97, s26;
      s_mul_i32 s26, s36, 663552""")+[Gp("s_add_u32 s16, s16, s26; s_addc_u32 s17, s17, 0")]+L(fin_srd(16,663552)+fin_srd(32,2359296))
    AW+=L(f"""v_lshrrev_b32 v60, 5, v1; v_bfe_u32 v61, v1, 3, 2; v_mul_u32_u24 v30, 73728, v61; v_and_b32 v61, 7, v1; v_lshl_add_u32 v30, v61, 4, v30; v_lshl_add_u32 v30, v60, 7, v30; v_add_u32 v29, 294912, v30;
      v_and_b32 v61, 15, v1; v_mul_u32_u24 v27, 73728, v61; v_lshrrev_b32 v61, 4, v1; v_lshl_add_u32 v27, v61, 4, v27;
      v_and_b32 v22, 19, v1; v_bfe_u32 v61, v1, 2, 1; v_lshl_add_u32 v22, v61, 3, v22; v_bfe_u32 v61, v1, 3, 1; v_lshl_add_u32 v22, v61, 2, v22;
      v_cvt_f32_u32 v23, v60; v_mul_f32 v23, 0.25, v23; v_and_b32 v24, v60, v1; v_lshlrev_b32 v24, 31, v24; v_or_b32 v24, 0.5, v24""")
    AW+=CB
    PF=KWS.get('PF',0); PFP=KWS.get('PFP',0)
    PF2=L("s_and_b32 s17, s17, 0xffff; s_mov_b32 s18, 5308416; s_mov_b32 s19, 0x20000; s_and_b32 s3, s37, 15; s_mul_i32 s3, s3, 41472; s_mul_i32 s67, s36, 663552; s_add_u32 s3, s3, s67; s_mul_i32 s67, s38, 10368; s_add_u32 s3, s3, s67; v_lshlrev_b32 v31, 6, v1")
    for k in range(3): PF2+=[("buffer_load_dword v3, v31, s[16:19], s3 offen",'pf')]+(["s_add_u32 s3, s3, 4096"] if k<2 else [])
    PF1=L("s_and_b32 s13, s13, 0xffff; s_mov_b32 s14, 5308416; s_mov_b32 s15, 0x20000; s_and_b32 s3, s37, 15; s_lshl_b32 s3, s3, 2; s_add_u32 s3, s3, s38; s_mul_i32 s3, s3, 82944; s_mul_i32 s67, s36, 1152; s_add_u32 s3, s3, s67")
    for k in range(3): PF1+=L(f"v_add_u32 v31, {64*k}, v1; v_mul_u32_u24 v30, 3641, v31; v_lshrrev_b32 v30, 16, v30; v_mul_u32_u24 v30, {9216-18*64}, v30; v_lshl_add_u32 v30, v31, 6, v30")+[("buffer_load_dword v3, v30, s[12:15], s3 offen",'pf')]
    PFA=(PF1 if (PF&2) and PFP in (0,2) else [])+(PF2 if (PF&1) and PFP==0 else [])
    PFB=(PF1 if (PF&2) and PFP==1 else [])+(PF2 if (PF&1) and PFP in (1,2) else [])
    for x in PRE+PFA: put(a,x)
    probe(a,'s0')
    def xread(t,mt):
        if t<32: a(f"ds_read_b128 {XB(t,mt)}, v{XA+t%4} offset:{(t//4)*8192+mt*4096}",('B',t,mt))
        else: a(f"ds_read_b128 {XB(t,mt)}, v{XA+4+t%4} offset:{mt*4096}",('B',t,mt))
    def wloads(a,t=104):
        def g0(a):
            a(f"v_and_b32 v{t}, 31, v1"); a(f"v_lshlrev_b32 v{t}, 6, v{t}"); a(f"v_add_u32 v{t}, s74, v{t}"); a(f"v_sub_u32 v{t+1}, 2048, v{t}"); a(f"v_and_b32 v{t+1}, 2047, v{t+1}")
            a(f"v_mul_u32_u24 v{t}, 578, v{t}"); a(f"v_mul_u32_u24 v{t+1}, 578, v{t+1}")
            for k,(vo,sr,o) in enumerate(((t,20,0),(t,24,0),(t+1,20,0),(t+1,24,0),(t,20,576),(t,24,576),(t+1,20,576),(t+1,24,576))):
                a(f"buffer_load_ushort v{128+k}, v{vo}, s[{sr}:{sr+3}], 0 offen offset:{o}")
        put(a,cond("g0l",["s_sub_u32 s3, s30, 1","s_or_b32 s3, s3, s75"],g0,"s_cbranch_scc1"))
    def WL(t): return L(f"""v_lshrrev_b32 v{t}, 1, v1; v_lshl_add_u32 v{t}, v{t}, 6, s74; v_sub_u32 v{t+1}, 2048, v{t}; v_and_b32 v{t+1}, 2047, v{t+1}; v_and_b32 v{t+2}, 1, v1; v_lshlrev_b32 v{t+2}, 4, v{t+2};
          s_movk_i32 s67, 578; v_mad_u32_u24 v{t}, v{t}, s67, v{t+2}; v_mad_u32_u24 v{t+1}, v{t+1}, s67, v{t+2}; s_lshl_b32 s67, s75, 5""")+([f"v_and_b32 v{t+o}, -4, v{t+o}" for o in range(2)]+[
          (f"buffer_load_dword v{144+k}, v{t+k//2}, s[{20+4*(k%2)}:{23+4*(k%2)}], s67 offen offset:16",'W0') for k in range(4)] if KWS.get('WA') else [])+[
          (f"buffer_load_dwordx4 {vr(d,4)}, v{t+o}, s[{sr}:{sr+3}], s67 offen",'W') for d,o,sr in ((32,0,20),(36,0,24),(88,1,20),(92,1,24))]+[('call',lambda a:wloads(a,t))]
    WL0=WL
    if KWS.get('WC'):
        def WL(t): return [cond("wl",["s_cmp_eq_u32 s30, 1"],lambda a:[put(a,x) for x in WL0(t)],m=1)]
    def xloop(stepfn,bars,pre=None,LEAD=4):
        for u in range(36+LEAD):
            for k,(ub,wl,wv,post) in enumerate(bars):
                if ub==u:
                    probe(a,'z%d'%k); a.wait(l=wl,v=wv); probe(a,'y%d'%k); a("s_barrier"); probe(a,'x%d'%k)
                    for x in post: put(a,x)
            if u<36:
                xread(u,0); xread(u,1)
                if u%4==0 and pre: pre(u//4)
            if u>=LEAD: stepfn(u-LEAD)
    DM=[('grp',dma_items(n//2,n%2)) for n in range(2*D)]
    def atom(y):
        o=[]
        for z in y:
            if isinstance(z,str) and z.startswith(("s_cselect","s_addc")): o[-1]=('grp',(o[-1][1] if isinstance(o[-1],tuple) else [o[-1]])+[z])
            else: o.append(z)
        return o
    def mix(x,y):
        o=[]; y=atom(y)
        for k in range(len(x)): o+=x[k:k+1]+y[(k*len(y))//len(x):((k+1)*len(y))//len(x)]
        return o
    WE=KWS.get('WE',0)
    if WE==1:
        for x in IDS+WSRD+WL(120): put(a,x)
        IDS=["s_nop 0"]; WSRD=[]; WL=lambda t:["s_nop 0"]
    a("s_cmp_eq_u32 s29, 0"); a("s_cbranch_scc1 Lkf_notask")
    st0=a.fork()
    YA=160; HB=192
    a("v_and_b32 v57, 15, v1"); a("s_lshl_b32 s3, s28, 4"); a("v_add_u32 v57, s3, v57")
    a("v_bfe_u32 v59, v1, 4, 1"); a("v_cvt_f32_u32 v58, v59"); a("v_mul_f32 v58, 0.25, v58")
    a("v_lshl_add_u32 v59, v57, 1, v59"); a("v_cmp_eq_u32 vcc, 1, v59"); a("v_mov_b32 v59, 288"); a("v_cndmask_b32 v57, v57, v59, vcc")
    a("v_mov_b32 v59, 0"); a("v_cndmask_b32 v58, v58, v59, vcc")
    a("s_lshl_b32 s3, s54, 0xffffffff & 31") if 0 else None
    a("s_lshr_b32 s3, s54, 1"); a("v_lshl_add_u32 v59, v40, 3, s3"); a("v_mul_u32_u24 v59, v59, v57")
    for x in cos_mod(a,69,59,69,58)[:-1]: a(x)
    a("v_cvt_f32_u32 v68, v57"); a(f"v_mul_f32 v68, {f2u(1/576)}, v68")
    a(f"v_mul_f32 v56, {f2u(16.0)}, v68")
    for j in range(16): a(f"v_fmamk_f32 v{40+j}, v68, {f2u(float(j if j<8 else j+8))}, v69")
    a("v_cos_f32 v56, v56")
    for j in range(16): a(f"v_cos_f32 v{40+j}, v{40+j}")
    a("v_add_f32 v56, v56, v56")
    FB=lambda t:(60 if (t//2)%2==0 else 108)+4*(t%2)
    def cvtF(t):
        c=40 if t%2==0 else 48
        return [f"v_cvt_pk_bf16_f32 v{FB(t)+j}, v{c+2*j}, v{c+2*j+1}" for j in range(4)]
    def pkF(d,o): return [f"v_fma_f32 v{d+j}, v56, v{o+j}, -v{d+j}" for j in range(8)]
    for x in cvtF(0)+cvtF(1): a(x)
    TF=spread(17,[(0,TW[0],RING_),(TW[4],TW[3],DM),(TW[0],TW[2],atom(IDS+WSRD+(WL(104) if len(TW)<6 else [])+AFR(124)))]+([(TW[5],TW[5]+0.25,WL(104))] if len(TW)>5 else []))
    def stepT(t):
        if t%2==0: return
        t-=1; more=t<34; probe(a,'t%d'%t)
        def M(mt,tt): a(f"v_mfma_f32_32x32x16_bf16 {vr(YA+16*mt,16)}, {XB(tt,mt)}, {vr(FB(tt),4)}, {vr(YA+16*mt,16) if tt else 0}")
        V=[pkF(40,48)[:6],pkF(40,48)[6:]+cvtF(t+2),pkF(48,40)[:6],pkF(48,40)[6:]+cvtF(t+3)]
        for g,(mt,tt) in enumerate(((0,t),(0,t+1),(1,t),(1,t+1))):
            if g%2==0: a.wait(l=[('B',t,mt),('B',t+1,mt)])
            M(mt,tt)
            if more:
                for x in V[g]+TF[2*t+g]: put(a,x)
    xloop(stepT,([(0,None,('x',2),PFB),(12,None,('x',8),[])] if XB2 else [(0,None,('x',8),[])])+[(BT[0],None,None,[(f"ds_read_b128 {vr(HB+4*k,4)}, v28 offset:{k*1024}",'hb') for k in range(8)]),(BT[1],'hb',None,[])])
    probe(a,'s1')
    a("v_and_b32 v68, 1, v1"); a("v_cvt_f32_u32 v68, v68"); a(f"v_mul_f32 v68, {f2u(-0.25)}, v68"); a("v_cvt_f32_u32 v69, s37"); a(f"v_fmamk_f32 v68, v69, {f2u(1/64)}, v68"); a("v_cos_f32 v68, v68")
    a("v_and_b32 v70, 31, v1"); a("v_mul_u32_u24 v70, 73728, v70"); a("v_lshrrev_b32 v69, 5, v1"); a("v_lshl_add_u32 v70, v69, 4, v70")
    a("v_cvt_pk_bf16_f32 v64, v68, -v68")
    a("v_and_b32 v71, 1, v1"); a("v_lshlrev_b32 v71, 6, v71"); a("v_lshl_add_u32 v71, v69, 4, v71"); a(f"v_add_u32 v71, {32*73728}, v71")
    for k in range(1,4): a(f"v_mov_b32 v{64+k}, v64")
    a("s_lshl_b32 s3, s28, 5"); a("s_add_u32 s3, s3, s37"); a("s_lshl_b32 s3, s3, 7"); a(f"s_add_u32 s3, s3, {WS_R}")
    for k in range(16): a(f"v_cvt_pk_bf16_f32 v{40+k}, v{YA+2*k}, v{YA+2*k+1}")
    for s in range(4):
        for nt in range(3):
            d=vr(96+16*nt if nt<2 else YA,16)
            a(f"v_mfma_f32_32x32x16_bf16 {d}, {vr(40+4*s,4)}, {vr(HB+8*s+4*nt,4) if nt<2 else 'v[64:67]'}, {d if s else 0}")
    for nt in range(3):
        if nt==2: a("s_mov_b32 exec_lo, 3"); a("s_mov_b32 exec_hi, 3")
        for qh in range(2):
            b=(96+16*nt if nt<2 else YA)+8*qh; u=176+4*(2*nt+qh)
            for k in range(4): a(f"v_cvt_pk_bf16_f32 v{u+k}, v{b+2*k}, v{b+2*k+1}")
            a(f"buffer_store_dwordx4 {vr(u,4)}, v{70 if nt<2 else 71}, s[4:7], s3 offen offset:{(nt%2)*64+qh*32}{SC}",'R')
    a("s_mov_b64 exec, -1")
    a("s_branch Lkf_join0")
    e1=a.fork(); a.restore(st0)
    a("Lkf_notask:")
    a("s_cmp_lg_u32 s38, 3"); a("s_cbranch_scc1 Lkf_pn")
    stn=a.fork()
    for x in L(fin_srd(68,1152)+f"v_lshlrev_b32 v12, 4, v1; s_mov_b32 m0, {RING+3*NSLOT*2048+9*2048}"): a(x)
    a("buffer_load_dwordx4 v12, s[68:71], 0 offen lds",'gw'); a("buffer_load_dwordx4 v12, s[68:71], 0 offen offset:1024 lds",'gw')
    for x in ZF: put(a,x)
    a.wait(v=('x',2 if XB2 else 8)); a("s_barrier")
    for x in PFB+RING_+AFR(40): put(a,x)
    HT=80
    HBI=L(f"""v_and_b32 v77, 31, v1; v_cvt_f32_u32 v76, v77; v_mul_f32 v76, {f2u(1/64)}, v76;
      v_lshrrev_b32 v77, 5, v1; v_lshlrev_b32 v77, 7, v77; v_add_u32 v77, s37, v77; v_cvt_f32_u32 v77, v77; v_mul_f32 v77, {f2u(1/32)}, v77; v_mul_f32 v77, v77, v76;
      v_mul_f32 v78, {f2u(8.0)}, v76; v_cos_f32 v78, v78""")
    HR=[HT,HT+4,136,140]
    for h in range(2):
        HBI+=[f"v_fmamk_f32 v{HR[2*h+1]+r}, v76, {f2u(float(8*h+r))}, v77" for r in range(4)]
        for r in range(4): HBI+=[f"v_cos_f32 v{HR[2*h]+r}, v{HR[2*h+1]+r}",f"v_sin_f32 v{HR[2*h+1]+r}, v{HR[2*h+1]+r}"]
    HBI+=["v_add_f32 v78, v78, v78"]
    for h in range(8):
        for nt in range(2):
            b=HR[2*(h%2)+nt]; o=HR[2*((h+1)%2)+nt]
            if h>=2: HBI+=[f"v_fma_f32 v{b+r}, v78, v{o+r}, -v{b+r}" for r in range(4)]
            HBI+=[f"v_cvt_pk_bf16_f32 v{HB+8*(h//2)+4*nt+2*(h%2)+q}, v{b+2*q}, v{b+2*q+1}" for q in range(2)]
    HBI+=[(f"ds_write_b128 v28, {vr(HB+4*k,4)} offset:{k*1024}",'hw') for k in range(8)]
    def mkTG(t,d):
        TG=L(f"v_and_b32 v{t}, 15, v1; v_cvt_f32_u32 v{t}, v{t}; v_mul_f32 v{t}, {f2u(1/32)}, v{t}; v_add_f32 v{t+1}, 0.5, v{t}; v_lshrrev_b32 v{t+2}, 4, v1; v_lshlrev_b32 v{t+2}, 2, v{t+2}; v_cvt_f32_u32 v{t+2}, v{t+2}")
        for jj in range(0,8,2):
            TG+=[f"v_add_f32 v{t+4+e}, {f2u(float(16*((jj+e)//4)+(jj+e)%4))}, v{t+2}" for e in range(2)]
            for mt in range(2):
                TG+=[f"v_mul_f32 v{t+6+e}, v{t+4+e}, v{t+mt}" for e in range(2)]
                for e in range(2): TG+=[f"v_cos_f32 v{t+8+e}, v{t+6+e}",f"v_sin_f32 v{t+10+e}, v{t+6+e}"]
                TG+=[f"v_cvt_pk_bf16_f32 v{d+4*mt+jj//2}, v{t+8}, v{t+9}",f"v_cvt_pk_bf16_f32 v{d+8+4*mt+jj//2}, v{t+10}, v{t+11}",f"v_cvt_pk_bf16_f32 v{d+16+4*mt+jj//2}, -v{t+10}, -v{t+11}"]
        return TG+[f"ds_write_b128 v28, {vr(d+4*k,4)} offset:{k*1024}" for k in range(6)]
    TQ=KWS.get('TQ',0); TG=mkTG(76,192); KWS['TGQ']=mkTG(120,96) if TQ else []
    if TQ: TG=["s_nop 0"]*7
    TG=spread(18,[(GW[4],GW[0],HBI),(GW[5],GW[6],DM),(GW[1],GW[2],atom(IDS+WSRD)),(GW[8],GW[8]+1,WL(136)),(GW[7],GW[3],TG[:-6]),(GW[3],GW[3]+1,TG[-6:])]); GA=lambda t,mt:(YA if t%2==0 else 104)+16*mt
    a("v_lshrrev_b32 v40, 5, v1"); a("v_lshlrev_b32 v40, 4, v40"); a(f"s_add_u32 s3, s41, {9*2048}"); a("v_add_u32 v40, s3, v40")
    def preG(p):
        if p==0: probe(a,'ga'); a.wait(v='gw'); probe(a,'gb')
        a(f"v_add_u32 v41, s{54+p}, v40")
        for k in range(4): a(f"ds_read_b128 {vr(44+16*(p%2)+4*k,4)}, v41 offset:{32*k}",('gw',4*p+k))
    def stepG(t):
        probe(a,'g%d'%t)
        a.wait(l=[('B',t,0),('B',t,1),('gw',t)])
        for mt in range(2):
            a(f"v_mfma_f32_32x32x16_bf16 {vr(GA(t,mt),16)}, {vr(44+16*((t//4)%2)+4*(t%4),4)}, {XB(t,mt)}, {vr(GA(t,mt),16) if t>1 else 0}")
            for x in TG[2*t+mt]: put(a,x)
    AT=L("s_and_b32 s67, s2, 7; s_lshl_b32 s67, s67, 5; v_mov_b32 v42, s67; v_mov_b32 v43, 1; s_mov_b64 exec, 1; global_atomic_add v42, v43, s[72:73] sc1; s_mov_b64 exec, -1")
    xloop(stepG,([(BG[0],None,('x',8),[])] if XB2 else [])+[(BG[1],'hw','z',AT),(BG[2],None,None,[])],preG)
    probe(a,'s1')
    a("v_and_b32 v44, 31, v1"); a("v_lshlrev_b32 v44, 2, v44"); a(f"v_add_u32 v44, {GATE}, v44"); a(f"v_mov_b32 v45, {f2u(1e30)}")
    for mt in range(2):
        z=YA+16*mt; a(f"v_add_f32 v{z}, v{z}, v{104+16*mt}")
        a(f"v_mul_f32 v40, {f2u(1.4426950408889634)}, v{z}"); a("v_exp_f32 v41, v40"); a("v_exp_f32 v42, -v40"); a("v_add_f32 v41, 1.0, v41"); a("v_add_f32 v42, 1.0, v42")
        a("v_min_f32 v41, v41, v45"); a("v_rcp_f32 v42, v42"); a(f"v_mul_f32 v42, {f2u(2.0/(2048*576))}, v42")
        a(f"ds_write_b32 v44, v41 offset:{128*mt}"); a(f"ds_write_b32 v44, v42 offset:{256+128*mt}")
    a("s_branch Lkf_join0")
    e2=a.fork(); a.restore(stn)
    a("Lkf_pn:")
    a.wait(v=('x',2 if XB2 else 8)); a("s_barrier")
    for x in PFB+RING_+AFR(40)+DM[:8]: put(a,x)
    if XB2: a.wait(v=('x',8)); a("s_barrier")
    if KWS.get('PN'):
        for x in IDS+WSRD+DM[8:]: put(a,x)
        xloop(lambda t: None,[(0,None,None,WL(104)),(KWS['PN']-1,None,None,[])])
    else:
        for x in IDS+WSRD+WL(104)+DM[8:]: put(a,x)
        xloop(lambda t: None,[(PB,None,None,[]),(37,None,None,[])])
    probe(a,'s1')
    e3=a.fork()
    a("Lkf_join0:"); a("s_waitcnt lgkmcnt(0)")
    a.joinm([(e[0],e[1],[],e[3]) for e in (e1,e2,e3)])
    gen_main(a,dbg,fin,QW,AW,RF,AP,BP)
    a("Lkf_end:"); a("s_endpgm")
    for l in TAIL: a.raw(l)
    a("Lkf_last:"); a("s_endpgm")
def variants(a,fn,name):
    for w in range(1,4):
        a(f"s_cmp_eq_u32 s38, {w}"); a(f"s_cbranch_scc1 L{name}_{w}")
    st=a.fork(); ends=[]
    for w in range(4):
        a.restore(st)
        if w: a(f"L{name}_{w}:")
        fn(w)
        if w<3: a(f"s_branch L{name}_j")
        ends.append(a.fork())
    a(f"L{name}_j:"); a.join(ends)
B0=["s_sub_u32 s3, s30, 1","s_or_b32 s3, s3, s75"]
def q_reduce():
    w1=[(f"ds_write_b128 v{15+k}, {vr(S1+16*k+4*c,4)} offset:{c*1024}",'pw') for k in range(1,4) for c in range(4)]
    w2=[('wait','pw',None),('bar',)]+[(f"ds_read_b128 {vr(S1+16+4*c,4)}, v19 offset:{c*1024}",('pr',c)) for c in range(12)]
    w3=[]
    for k in range(3):
        w3.append(('wait',('pr',4*k+3),None))
        w3+=[f"v_add_f32 v{S1+r}, v{S1+r}, v{S1+16+16*k+r}" for r in range(16)]
    return w1,w2,w3
def m_fwd():
    TC,TS,TN=160,168,176; Q=184; SS=[200,208,216,40]
    it=[(f"ds_read_b128 {vr(160+4*k,4)}, v28 offset:{k*1024}",'mt') for k in range(6)]
    it.append(('wait',None,'Rt'))
    for k in range(4):
        it.append((f"ds_read_b64_tr_b16 {vr(Q+4*k,2)}, v26 offset:{32*k}",'mq')); it.append((f"ds_read_b64_tr_b16 {vr(Q+4*k+2,2)}, v26 offset:{32*k+2048}",'mq'))
    it.append(('wait','mq',None))
    QA,QB,QC,QD=Q,Q+4,Q+8,Q+12
    cmb=((QA,QC,TN),(QD,QB,TS),(QB,QD,TN),(QC,QA,TS))
    for mt in range(2):
        for k,(x,y,T) in enumerate(cmb): it.append(f"v_mfma_f32_16x16x32_bf16 {vr(SS[k]+4*mt,4)}, {vr(TC+4*mt,4)}, {vr(x,4)}, 0")
        for k,(x,y,T) in enumerate(cmb): it.append(f"v_mfma_f32_16x16x32_bf16 {vr(SS[k]+4*mt,4)}, {vr(T+4*mt,4)}, {vr(y,4)}, {vr(SS[k]+4*mt,4)}")
    XR,XR2,XI,XI2=200,48,56,216
    for e in range(8):
        it+=[f"v_sub_f32 v{XR2+e}, v{SS[0]+e}, v{SS[1]+e}",f"v_add_f32 v{XR+e}, v{SS[0]+e}, v{SS[1]+e}",f"v_sub_f32 v{XI+e}, v{SS[2]+e}, v{SS[3]+e}",f"v_add_f32 v{XI2+e}, v{SS[2]+e}, v{SS[3]+e}"]
    ARR=(XR,XI,XR2,XI2)
    def sp1(a):
        a("v_lshrrev_b32 v64, 4, v1"); a("v_lshlrev_b32 v64, 4, v64"); a("v_add_u32 v64, s96, v64")
        a("v_and_b32 v65, 31, v1"); a("v_lshlrev_b32 v65, 2, v65"); a("v_add_u32 v65, s96, v65")
        a("s_mov_b32 exec_lo, 0x10001"); a("s_mov_b32 exec_hi, 0x10001")
        for k,r in enumerate(ARR):
            for h in range(2): a(f"ds_write_b128 v64, {vr(r+4*h,4)} offset:{128*k+64*h}")
        a("s_mov_b64 exec, -1"); a("s_waitcnt lgkmcnt(0)")
        for k in range(4): a(f"ds_read_b32 v{184+k}, v65 offset:{128*k}")
        a(f"ds_read_b128 v[188:191], v28 offset:{G0-TRIG}"); a("s_waitcnt lgkmcnt(0)")
        xr,xi,xr2,xi2,g1r,g1i,g2r,g2i=range(184,192)
        for d,L in ((192,((xr,g1r,1),(xi,g1i,-1),(xr2,g2r,1),(xi2,g2i,1))),(193,((xr,g1i,1),(xi,g1r,1),(xr2,g2i,1),(xi2,g2r,-1))),
                    (194,((xr2,g1r,1),(xi2,g1i,1),(xr,g2r,1),(xi,g2i,-1))),(195,((xi2,g1r,1),(xr2,g1i,-1),(xr,g2i,-1),(xi,g2r,-1)))):
            for n,(p,q,sg) in enumerate(L):
                if n==0: a(f"v_mul_f32 v{d}, v{p}, v{q}")
                else: a(f"v_fma_f32 v{d}, {'-' if sg<0 else ''}v{p}, v{q}, v{d}")
        for k in range(4): a(f"ds_write_b32 v65, v{192+k} offset:{128*k}")
        a("s_waitcnt lgkmcnt(0)")
    it.append(cond("sp1",B0,sp1,"s_cbranch_scc1"))
    for e in range(8):
        for (w,xr,xi,t) in ((32+e//2,XR+e,XI+e,64+(e%2)*4),(88+e//2,XR2+e,XI2+e,184+(e%2)*4)):
            it+=[(f"v_lshlrev_b32 v{t+q}, 16, v{w+4*q}" if e%2==0 else f"v_and_b32 v{t+q}, 0xffff0000, v{w+4*q}") for q in range(2)]
        for (w,xr,xi,t) in ((32+e//2,XR+e,XI+e,64+(e%2)*4),(88+e//2,XR2+e,XI2+e,184+(e%2)*4)):
            it+=[f"v_mul_f32 v{t+2}, v{xr}, v{t+1}",f"v_mul_f32 v{xr}, v{xr}, v{t}",f"v_fma_f32 v{xr}, -v{xi}, v{t+1}, v{xr}",f"v_fma_f32 v{xi}, v{xi}, v{t}, v{t+2}"]
    def sp2(a):
        a("v_lshrrev_b32 v64, 4, v1"); a("v_lshlrev_b32 v64, 4, v64"); a("v_add_u32 v64, s96, v64")
        a("s_mov_b32 exec_lo, 0x10001"); a("s_mov_b32 exec_hi, 0x10001")
        for k,r in enumerate(ARR):
            for h in range(2): a(f"ds_read_b128 {vr(r+4*h,4)}, v64 offset:{128*k+64*h}")
        a("s_waitcnt lgkmcnt(0)"); a("s_mov_b64 exec, -1")
    it.append(cond("sp2",B0,sp2,"s_cbranch_scc1"))
    PR,PI,PR2,PI2=XR,XI,XR2,XI2; DE,BE=208,40
    for e in range(0,8,2):
        for q in range(2): it+=[f"v_sub_f32 v{DE+e+q}, v{PR+e+q}, v{PR2+e+q}",f"v_add_f32 v{PR+e+q}, v{PR+e+q}, v{PR2+e+q}",f"v_sub_f32 v{BE+e+q}, v{PI+e+q}, v{PI2+e+q}",f"v_add_f32 v{PI+e+q}, v{PI+e+q}, v{PI2+e+q}"]
        for d,s in ((32,PR),(36,BE),(88,PI),(92,DE)): it.append(f"v_cvt_pk_bf16_f32 v{d+e//2}, v{s+e}, v{s+e+1}")
    return it
def m_inv():
    pa,pb,pg,pd=32,36,88,92; O=96
    it=[(f"ds_read_b128 a[{4*k}:{4*k+3}], v28 offset:{k*1024}",'mt') for k in range(6)]+[('wait','mt',None)]
    for nt in range(2):
        UC,US,UN=f"a[{4*nt}:{4*nt+3}]",f"a[{8+4*nt}:{11+4*nt}]",f"a[{16+4*nt}:{19+4*nt}]"
        cmb=((pa,pb,UN),(pg,pd,US),(pb,pa,US),(pd,pg,UN))
        for k,(x,y,T) in enumerate(cmb): it.append(f"v_mfma_f32_16x16x32_bf16 {vr(O+16*nt+4*k,4)}, {vr(x,4)}, {UC}, 0")
        for k,(x,y,T) in enumerate(cmb): it.append(f"v_mfma_f32_16x16x32_bf16 {vr(O+16*nt+4*k,4)}, {vr(y,4)}, {T}, {vr(O+16*nt+4*k,4)}")
    def k32(a):
        a("v_and_b32 v64, 15, v1"); a("v_cvt_f32_u32 v64, v64"); a(f"v_mul_f32 v64, {f2u(1/64)}, v64"); a("v_add_f32 v65, 0.25, v64")
        for nt in range(2):
            a(f"v_cos_f32 v66, v{64+nt}"); a(f"v_sin_f32 v67, v{64+nt}")
            for r in range(8): a(f"v_mul_f32 v{O+16*nt+r}, v66, v{O+16*nt+r}")
            for r in range(4): a(f"v_fma_f32 v{O+16*nt+r}, -v67, v{O+16*nt+8+r}, v{O+16*nt+r}"); a(f"v_fma_f32 v{O+16*nt+4+r}, v67, v{O+16*nt+12+r}, v{O+16*nt+4+r}")
    it.append(cond("k32",["s_cmp_eq_u32 s74, 32"],k32))
    for nt in range(2):
        b=O+16*nt
        for h,u in ((0,32+4*nt),(1,88+4*nt)):
            for c in range(4):
                n='-' if (h==1 and c>=2) else ''
                it.append(f"v_cvt_pk_bf16_f32 v{u+c}, {n}v{b+8*h+2*c}, {n}v{b+8*h+2*c+1}")
            it.append((f"buffer_store_dwordx4 {vr(u,4)}, v27, s[4:7], s{8+2*h+nt} offen offset:{64*h}{SC}",'E'))
    return it
def gen_main(a,dbg,fin,QW,AW,RF,AP,BP):
    T0=lambda blk,mt:S0+16*(2*blk+mt); T1=lambda blk,mt:S1+16*(2*blk+mt)
    probe(a,'s2')
    for u in range(P): aread(a,u)
    def g0c(a):
        for k in range(8): a(f"v_lshlrev_b32 v{128+k}, 16, v{128+k}")
        a("v_add_f32 v136, v128, v130"); a("v_sub_f32 v137, v129, v131"); a("v_add_f32 v138, v132, v134"); a("v_sub_f32 v139, v133, v135")
        a("v_add_f32 v140, v136, v138"); a("v_add_f32 v141, v137, v139"); a("v_sub_f32 v142, v136, v138"); a("v_sub_f32 v143, v137, v139")
        for r in range(140,144): a(f"v_mul_f32 v{r}, 0.25, v{r}")
        a(f"ds_write_b128 v28, v[140:143] offset:{G0-TRIG}")
    wpk=[('wait',None,('D',9,1)),cond("g0c",B0,g0c,"s_cbranch_scc1")]
    wfx=[]
    if KWS.get('WA'):
        wfx=[('wait',None,'W'),"s_and_b32 s8, s74, 1","s_lshl_b32 s8, s8, 4"]
        for k,d in enumerate((32,36,88,92)): wfx+=[f"v_alignbit_b32 v{d+c}, v{d+c+1 if c<3 else 144+k}, v{d+c}, s8" for c in range(4)]
        wfx=[(KWS['WA'],8.75,wfx)]
    wst=[('wait',None,'W'),"v_add_u32 v62, 4096, v19"]+[f"ds_write_b128 v62, {vr(d,4)} offset:{k*1024}" for k,d in enumerate((32,36,88,92))]+["v_lshlrev_b32 v63, 3, v1","v_add_u32 v63, s96, v63"]
    wst+=[(f"ds_read_b64_tr_b16 {vr(d+2*mt,2)}, v63 offset:{4096+k*1024+mt*512}",'wt') for k,d in enumerate((32,36,88,92)) for mt in range(2)]
    variants(a,lambda w: job(a,0,9,lambda blk,mt: S1+16*((2*blk+mt-w)%4),lambda s:4*s+w,[(0.25,RF,QW),(RF,RF+0.25,[('grp',[('wait',None,'R'),setflag(0)])]),(8.75,9,wpk)]+wfx+([(0.25,7.5,KWS['TGQ'])] if w==3 and KWS['TGQ'] else [])),"q1")
    probe(a,'s3')
    a("s_mov_b32 s20, 0x3f80"); a("s_mov_b32 s21, 0x3f800000")
    w1,w2,w3=q_reduce()
    gate=["v_and_b32 v64, 31, v1","v_lshlrev_b32 v64, 2, v64",f"v_add_u32 v64, {GATE}, v64","s_and_b32 s3, s38, 1","s_lshl_b32 s3, s3, 7","v_add_u32 v65, s3, v64",
          ("ds_read_b32 v3, v64",'gt'),("ds_read_b32 v31, v64 offset:128",'gt'),("ds_read_b32 v2, v65",'gt')]
    siluq=silu_items(S1,16,48,2)+[(f"ds_write_b128 v15, v[48:51]",'hq'),(f"ds_write_b128 v15, v[52:55] offset:2048",'hq')]
    pc_l=[("global_load_dword v68, v66, s[72:73] sc1",'pC')]
    W3=["s_cmp_eq_u32 s38, 3"]; MV=["s_cmp_eq_u32 s30, 1"]
    def seq(L_): return lambda a:[put(a,x) for x in L_]
    pollC=["v_and_b32 v66, 7, v1","v_lshlrev_b32 v66, 5, v66",cond("pc",W3,seq(pc_l),m=1)]
    chkC=[cond("cc",W3,seq([check("C",pc_l,["v_cmp_gt_u32 vcc, 32, v68","s_or_b64 vcc, vcc, vcc"],'pC')]))]
    pr_l=[("buffer_load_dword v69, v67, s[4:7], s22 offen sc1",'pR')]
    pollR=["v_and_b32 v67, 31, v1","v_lshlrev_b32 v67, 2, v67",f"s_mul_i32 s22, s75, {FS}",f"s_add_u32 s22, s22, {FR}",cond("pr",MV,seq(pr_l),m=1)]
    chkR=[cond("cr",MV,seq([check("R",pr_l,["v_cmp_eq_u32 vcc, 0, v69","s_or_b64 vcc, vcc, vcc"],'pR'),"s_mov_b32 m0, s96"]+
          [(f"buffer_load_dwordx4 v12, s[4:7], s31 offen offset:{q*1024} sc1 lds",'Rt') for q in range(4)]),m=1)]
    pfw=[]
    if KWS.get('PFS'):
        pf=["s_and_b32 s3, s37, 15","s_mul_i32 s3, s3, 41472","s_mul_i32 s26, s38, 10368","s_add_u32 s26, s3, s26","v_lshlrev_b32 v66, 6, v1"]
        for k in range(3): pf+=[("buffer_load_dword v68, v66, s[16:19], s26 offen",'pf')]+(["s_add_u32 s26, s26, 4096"] if k<2 else [])
        if KWS.get('PFX'):
            pf=pf[:4]
            for k in range(11): pf+=[(f"buffer_load_dwordx4 v[56:59], v12, s[16:19], s26 offen offset:{(k%4)*1024}",'pf')]+(["s_add_u32 s26, s26, 4096"] if k%4==3 else [])
        pfw=[(KWS['PFS'],KWS['PFS']+KWS.get('PFL',0.75),pf)]
    job(a,9,36,T0,lambda s:s,pfw+[(0.25,0.5,pollC),(1,5,[('bar',)]+w1+gate),(5.75,6,chkC),(1.25,11,AW),(6,10,w2),(10,14.5,w3),(14.5,17,wst),(AP[0],AP[0]+1.5,pollR),(KWS.get('SQ',14.5),AP[2],siluq),(AP[1],AP[1]+0.25,chkR),
        (AP[2],35.5,m_fwd()),(35.5,36,[('wait','hq',None),('bar',)])])
    probe(a,'s4')
    DF=KWS.get('DF',0); PZ=KWS.get('PZ',('B',18,24))
    def poison(r): return [f"v_mov_b32 v{r+c}, -1" for c in range(4)]+[(f"buffer_store_dwordx4 {vr(r,4)}, v{30 if k%2==0 else 29}, s[4:7], s70 offen offset:{(k//2)*256}{SC}",'pz') for k in range(8)]
    pzw=lambda nm,r: [(PZ[1],PZ[2],poison(r))] if DF and PZ[0]==nm else []
    job(a,45,36,T1,lambda s:s,pzw('B',68)+[(0.75,32,silu_strip(S0,0,'hA')),(18,24,m_inv()),(31.5,31.75,[('grp',[('wait',None,'E'),setflag(1)])]),
        (33,35.5,[hread(t,mt) for t in range(3) for mt in range(2)]),(35.5,36,[('wait',('hA',3),None),('bar',)])])
    probe(a,'s5')
    pe_l=[("buffer_load_dword v68, v66, s[4:7], s22 offen sc1",'pE'),("buffer_load_dword v69, v66, s[4:7], s23 offen sc1",'pE')]
    pollE=["v_min_u32 v66, 32, v1","v_lshlrev_b32 v66, 2, v66","s_lshr_b32 s24, s38, 1","s_lshl_b32 s3, s36, 1","s_add_u32 s24, s24, s3","s_add_u32 s25, s36, 12",
           ('grp',["s_and_b32 s3, s36, 6","s_cmp_eq_u32 s3, 4","s_cselect_b32 s25, s25, s24","s_cselect_b32 s26, 1, 0"]),
           f"s_mul_i32 s22, s24, {FS}",f"s_add_u32 s22, s22, {FE}",f"s_mul_i32 s23, s25, {FS}",f"s_add_u32 s23, s23, {FE}","v_mov_b32 v69, 1",cond("pe",["s_cmp_eq_u32 s26, 1"],seq(pe_l[1:])),pe_l[0]]
    edma=[check("E",pe_l,["v_cmp_eq_u32 vcc, 0, v68","v_cmp_eq_u32 s[22:23], 0, v69","s_or_b64 vcc, vcc, s[22:23]"][:1]+["v_cmp_eq_u32 s[28:29], 0, v69","s_or_b64 vcc, vcc, s[28:29]"],'pE'),
          "s_mul_i32 s3, s37, 18","s_add_u32 s22, s24, s3","s_lshl_b32 s22, s22, 12",f"s_add_u32 s22, s22, {WS_E}","s_add_u32 s23, s25, s3","s_lshl_b32 s23, s23, 12",f"s_add_u32 s23, s23, {WS_E}",
          "s_lshl_b32 s27, s38, 12","s_add_u32 s27, s27, 12288","s_and_b32 s28, s38, 1","s_lshl_b32 s28, s28, 12","s_add_u32 s28, s28, 28672"]
    edma2=[('grp',["s_mov_b32 m0, s27"]+[(f"buffer_load_dwordx4 v12, s[4:7], s22 offen offset:{q*1024} sc1 lds",'Et') for q in range(4)]),
           cond("ex",["s_cmp_eq_u32 s26, 1"],lambda a:[a("s_mov_b32 m0, s28")]+[a(f"buffer_load_dwordx4 v12, s[4:7], s23 offen offset:{q*1024} sc1 lds") for q in range(4)]),
           ("buffer_load_dword v69, v12, s[4:7], 0 offen",'Et')]
    hi=["v_and_b32 v64, 31, v1","s_and_b32 s3, s38, 1","s_lshl_b32 s3, s3, 5","v_add_u32 v64, s3, v64","v_lshlrev_b32 v65, 2, v64",f"v_add_u32 v65, {GATE+256}, v65",("ds_read_b32 v62, v65",'gm'),
        "v_lshlrev_b32 v64, 5, v64","v_add_u32 v64, s37, v64","v_cvt_f32_u32 v64, v64",f"v_mul_f32 v64, {f2u(1/2048)}, v64",f"v_mul_f32 v65, {f2u(16.0)}, v23","v_mul_f32 v65, v65, v64"]
    for s in range(4):
        for q in range(0,4,2):
            hi+=[f"v_fmamk_f32 v{56+e}, v64, {f2u(float(8*s+q+e))}, v65" for e in range(2)]
            for e in range(2): hi+=[f"v_cos_f32 v{58+2*e}, v{56+e}",f"v_sin_f32 v{59+2*e}, -v{56+e}"]
            hi+=[f"v_cvt_pk_bf16_f32 v{40+4*s+q+e}, v{58+2*e}, v{59+2*e}" for e in range(2)]
    hi+=[('grp',["v_lshlrev_b32 v56, 31, v1","v_or_b32 v56, 0x3f003f00, v56","v_cmp_gt_u32 vcc, 32, v1","v_cndmask_b32 v40, v40, v56, vcc"]),
         "v_lshrrev_b32 v63, 5, v1","v_lshlrev_b32 v63, 9, v63","v_bfe_u32 v56, v1, 2, 2","v_lshl_add_u32 v63, v56, 6, v63","v_bfe_u32 v56, v1, 4, 1","v_lshl_add_u32 v63, v56, 5, v63","v_and_b32 v56, 3, v1","v_lshl_add_u32 v63, v56, 3, v63"]
    UD,UA=S1+16,S1+32
    def unit(sb,slot_s):
        it=[f"v_add_u32 v57, {sb}, v63"]
        for s in range(4): it+=[(f"ds_read_b64_tr_b16 {vr(UA+4*s,2)}, v57 offset:{s*1024}",'ua'),(f"ds_read_b64_tr_b16 {vr(UA+4*s+2,2)}, v57 offset:{s*1024+256}",('ua',s))]
        for s in range(4): it+=[('wait',('ua',s),None),f"v_mfma_f32_32x32x16_bf16 {vr(UD,16)}, {vr(UA+4*s,4)}, {vr(40+4*s,4)}, {vr(UD,16) if s else 0}"]
        it+=slot_s
        it2=[f"v_mul_f32 v{UD+r}, v62, v{UD+r}" for r in range(16)]+[f"v_cvt_pk_bf16_f32 v{UD+r}, v{UD+2*r}, v{UD+2*r+1}" for r in range(8)]
        it2+=[(f"ds_write_b128 v56, {vr(UD,4)}",'uw'),(f"ds_write_b128 v56, {vr(UD+4,4)} offset:2048",'uw')]
        return it,it2
    u1,u1b=unit("s27",["s_lshr_b32 s3, s38, 1","s_lshl_b32 s3, s3, 12","s_and_b32 s53, s38, 1","s_lshl_b32 s53, s53, 10","s_add_u32 s3, s3, s53","v_add_u32 v56, s3, v12"])
    def u2(a):
        x,y=unit("s28",["s_lshl_b32 s3, s38, 10","s_add_u32 s3, s3, 8192","v_add_u32 v56, s3, v12"])
        a("s_waitcnt lgkmcnt(0)")
        for z in x+y: put(a,z)
        a("s_waitcnt lgkmcnt(0)")
    EXW=["s_lshr_b32 s3, s38, 1","s_sub_u32 s3, s26, s3","s_cmp_eq_u32 s3, 1"]
    J0=["s_cmp_eq_u32 s36, 0","s_cselect_b64 vcc, -1, 0"]
    gq=["s_lshl_b32 s43, s36, 2","s_add_u32 s43, s43, s38","s_lshl_b32 s43, s43, 3","s_add_u32 s43, s43, 574"]+gd_init("s97","s43")+gd_step(32,["s_cmp_eq_u32 s43, 574","s_cselect_b64 vcc, -1, 0"])
    def gqx(a):
        for z in ["s_lshl_b32 s43, s36, 1","s_add_u32 s43, s43, s38","s_lshl_b32 s43, s43, 3","s_add_u32 s43, s43, 766"]+gd_init("s97","s43")+gd_step(40): put(a,z)
    def gmain(scol): return ["s_lshl_b32 s43, s36, 5","s_add_u32 s43, s43, 574"]+gd_init(scol,"s43")+gd_step(GPK,J0)+uread(0,0)
    def ext(tile,scol,name,xtra=[]):
        for e in range(4): ext_step(a,tile,GPK+8*(e%2),e,e%2,(uread(e+1,(e+1)%2)+gd_step(GPK+8*((e+1)%2))+(xtra if e==0 else [])) if e<3 else [])
        def xt(a):
            for z in ["s_lshl_b32 s43, s36, 4","s_add_u32 s43, s43, 766"]+gd_init(scol,"s43")+uread(4,1)+gd_step(GPK): put(a,z)
            ext_step(a,tile,GPK,4,1,[]);
            for z in uread(5,0)+gd_step(GPK+8): put(a,z)
            ext_step(a,tile,GPK+8,5,0,[])
        put(a,cond(name,["s_cmp_eq_u32 s26, 1"],xt))
    PM=KWS.get('PM',0); AQ=KWS.get('AQ',(16.75,9,16,18.5,24,25,27.5,30,28.5,31))
    def jit(s,blk):
        it=[]
        if s==17 and blk==0: it+=[('wait',('hB',1 if PM else 3),None),('bar',)]
        if PM and s==25 and blk==0: it+=[('wait',('hB',3),None),('bar',)]
        if s+3<36 and not KWS.get('X2'): it.append(hread(perm(s+3),blk))
        return it
    sB=silu_strip(S1,32768,'hB',PM); hf=[k for k,x in enumerate(sB) if x[0]=='wait'][0]
    sw=[(0.75,16.75,sB[:hf]),(16.75,24.75,sB[hf:])] if PM else [(0.75,16.75,sB)]
    if KWS.get('X1'): sw=[(0.75,16.75,[x for x in sB if not isinstance(x,str)])]
    if PM==2: sw=[(0.75,AQ[0],sB[:hf]),(AQ[0],24.75,sB[hf:])]
    job(a,81,36,T0,perm,sw+pzw('A',88)+[(AQ[1],AQ[1]+2,pollE),(AQ[2],AQ[2]+1,edma),(17.75,18,edma2),(AQ[3],AQ[4],hi),(AQ[4],AQ[5],[('wait','gm','Et')]+gq[:8]),(AQ[5],AQ[6],u1+gq[8:40]),(AQ[6],AQ[7],gq[40:]),(AQ[8],AQ[9],u1b),
        (31,31.25,[cond("u2",EXW,u2,"s_cbranch_scc0"),cond("gqx",EXW,gqx,"s_cbranch_scc0")]),(31.5,35.75,gmain("s66")[:-2]),(34,34.25,[('wait',['uw',('B',35,1)],None),('bar',)]),(35.75,36,uread(0,0))],jit)
    ext(T0,"s66","xa")
    probe(a,'s6')
    def q2(w):
        T=lambda blk,mt: S1+16*((2*blk+mt-w)%4)
        job(a,117,9,T,lambda s:4*s+w,pzw('Q',68)+[(0.75,8.5,store_strip(S0,"s69",'stA')),(8,8.5,uread(w,0))])
        ext_step(a,T,32,w,0,[])
        if w<2:
            def xq(a):
                for z in uread(4+w,1): put(a,z)
                ext_step(a,T,40,4+w,1,[])
            put(a,cond("xq",["s_cmp_eq_u32 s26, 1"],xq))
    variants(a,q2,"q2")
    probe(a,'s7')
    w1,w2,w3=q_reduce()
    stq=[]
    for p in range(2):
        stq+=[f"v_cvt_pk_bf16_f32 v{88+4*p+c}, v{S1+8*p+2*c}, v{S1+8*p+2*c+1}" for c in range(4)]
        stq.append((f"buffer_store_dwordx4 {vr(88+4*p,4)}, v30, s[4:7], s71 offen offset:{p*256}{SC}",'stQ'))
    fa=["v_and_b32 v50, 7, v1","v_lshlrev_b32 v50, 2, v50",f"s_mul_i32 s22, s37, {12*FS}",f"s_mul_i32 s3, s38, {FS}","s_add_u32 s23, s22, s3",f"s_add_u32 s23, s23, {FF}",
        "s_lshl_b32 s3, s37, 3","s_add_u32 s3, s3, s36","s_mul_i32 s24, s3, 73728","s_lshl_b32 s3, s36, 8","s_add_u32 s3, s3, s37","s_mul_i32 s25, s3, 1152",
        "v_mul_u32_u24 v51, 9216, v50","v_lshrrev_b32 v52, 3, v1","v_lshl_add_u32 v51, v52, 4, v51"]
    fa+=["s_and_b32 s3, s38, 2","s_lshr_b32 s43, s36, 2","s_add_u32 s3, s3, s43",f"s_mul_i32 s3, s3, {FS}","s_add_u32 s22, s22, s3",f"s_add_u32 s22, s22, {FF+4*FS}",
         "s_lshl_b32 s3, s66, 3","s_add_u32 s27, s24, s3","s_lshl_b32 s3, s97, 3","s_add_u32 s28, s24, s3","s_lshl_b32 s3, s38, 8","s_add_u32 s28, s28, s3"]
    pa_l=[("buffer_load_dword v53, v50, s[4:7], s23 offen sc1",'pA'),("buffer_load_dword v54, v50, s[4:7], s22 offen sc1",'pA')]
    LA=S1+16
    def ul(dst,sb,tag): return [(f"buffer_load_dwordx4 {vr(dst+4*jp,4)}, v{12 if jp<4 else 55}, s[4:7], {sb} offen{SC}",(tag,jp)) if 0 else ('grp',[(f"buffer_load_dwordx4 {vr(dst+4*jp,4)}, v12, s[4:7], {sb} offen{SC}",(tag,jp)),f"s_add_u32 {sb}, {sb}, 9216"]) for jp in range(8)]
    chkA=[check("A",pa_l,["v_cmp_eq_u32 vcc, 0, v53","v_cmp_eq_u32 s[30:31], 0, v54","s_or_b64 vcc, vcc, s[30:31]"],'pA')]+ul(LA,"s27",'uA')
    ldQ=[('grp',["s_mov_b64 exec, 0xffff"]+ul(224,"s28",'uQ')+["s_mov_b64 exec, -1"])]
    wins=[(0.25,3,w1),(4,7.5,w2),(BP[0],BP[0]+0.25,[('grp',[('wait',None,'stA'),setflag(2)])]),(8,12.5,w3),(12.5,14,stq),(BP[1],BP[1]+0.25,[('grp',[('wait',None,'stQ'),setflag(3)])]),(BP[4],36,gmain("s67"))]
    wins+=[(15,20,fa),(BP[2],BP[2]+0.5,pa_l),(BP[3],36,chkA)]
    job(a,126,36,T0,lambda s:s,wins)
    ext(T0,"s67","xb",ldQ)
    probe(a,'s8')
    if DF:
        BL=KWS.get('BL',0)
        def bload(jp): return f"buffer_load_dwordx4 {vr(S0+4*jp,4)}, v12, s[4:7], s{44+jp} offen{SC}"
        def bloads():
            for jp in range(8): a(bload(jp),('uB',jp))
        a("s_lshl_b32 s3, s67, 3"); a("s_add_u32 s44, s24, s3")
        for jp in range(1,8): a(f"s_add_u32 s{44+jp}, s{43+jp}, 9216")
        for x in store_strip(S0,"s70",'stB',1): put(a,x)
        if BL==0: bloads()
        for x in unit_sum(LA,40,'uA')+["s_add_u32 s3, s25, s66",("buffer_store_dwordx4 v[40:43], v51, s[32:35], s3 offen",'o')]: put(a,x)
        probe(a,'f0')
        if BL==1: bloads()
        for x in unit_sum(224,56,'uQ'): put(a,x)
        a("s_add_u32 s3, s25, s97"); a("s_lshl_b32 s43, s38, 5"); a("s_add_u32 s3, s3, s43"); a("s_mov_b64 exec, 0xffff")
        a("buffer_store_dwordx4 v[56:59], v51, s[32:35], s3 offen",'o'); a("s_mov_b64 exec, -1")
        if BL==2: bloads()
        probe(a,'f1')
        a("s_mov_b32 s53, 0"); a.wait(v=('uB',7)); probe(a,'f2')
        a("Lbp_loop:"); a("s_mov_b32 s3, 0")
        for jp in range(8):
            a(f"v_cmp_eq_u32 vcc, -1, v{S0+4*jp}"); a("s_or_b64 vcc, vcc, vcc"); a(f"s_cbranch_scc0 Lbp_n{jp}")
            a.raw(bload(jp)); a("s_mov_b32 s3, 1"); a(f"Lbp_n{jp}:")
        a("s_cmp_eq_u32 s3, 0"); a("s_cbranch_scc1 Lbp_done")
        a("s_waitcnt vmcnt(0)"); a("s_add_u32 s53, s53, 1"); a("s_cmp_lt_u32 s53, 20000"); a("s_cbranch_scc1 Lbp_loop")
        a("Lbp_done:")
        probe(a,'s9')
        for x in unit_sum(S0,64,'uB'):
            if isinstance(x,str): a(x)
        a("s_add_u32 s3, s25, s67"); a("buffer_store_dwordx4 v[64:67], v51, s[32:35], s3 offen",'o')
    elif KWS.get('SP'):
        for x in store_strip(S0,"s70",'stB'): put(a,x)
        for x in unit_sum(LA,40,'uA')+["s_add_u32 s3, s25, s66",("buffer_store_dwordx4 v[40:43], v51, s[32:35], s3 offen",'o')]: put(a,x)
        a(f"s_add_u32 s23, s23, {8*FS}"); a("s_lshl_b32 s3, s67, 3"); a("s_add_u32 s27, s24, s3")
        qs=unit_sum(224,56,'uQ'); h=KWS['SP']-1
        for x in qs[:h]: put(a,x)
        probe(a,'f1'); a.wait(v='stB'); put(a,setflag(4)); probe(a,'f2')
        pl=lambda r: f"buffer_load_dword v{r}, v50, s[4:7], s23 offen sc1"
        a(pl(53),'pB')
        for x in qs[h:]: put(a,x)
        a("s_add_u32 s3, s25, s97"); a("s_lshl_b32 s43, s38, 5"); a("s_add_u32 s3, s3, s43"); a("s_mov_b64 exec, 0xffff")
        a("buffer_store_dwordx4 v[56:59], v51, s[32:35], s3 offen",'o'); a("s_mov_b64 exec, -1")
        a(pl(54),'pB'); a("s_mov_b32 s53, 0"); a("Lbp_loop:")
        for r in (53,54):
            a.raw("s_waitcnt vmcnt(1)"); a(f"v_cmp_eq_u32 vcc, 0, v{r}"); a("s_or_b64 vcc, vcc, vcc"); a("s_cbranch_scc0 Lbp_done"); a.raw(pl(r))
        a("s_add_u32 s53, s53, 1"); a("s_cmp_lt_u32 s53, 20000"); a("s_cbranch_scc1 Lbp_loop")
        a("Lbp_done:"); probe(a,'s9')
        for x in ul(S1,"s27",'uB'): put(a,x)
        for x in unit_sum(S1,64,'uB'): put(a,x)
        a("s_add_u32 s3, s25, s67"); a("buffer_store_dwordx4 v[64:67], v51, s[32:35], s3 offen",'o')
    else:
        for x in store_strip(S0,"s70",'stB'): put(a,x)
        for x in unit_sum(LA,40,'uA')+["s_add_u32 s3, s25, s66",("buffer_store_dwordx4 v[40:43], v51, s[32:35], s3 offen",'o')]: put(a,x)
        probe(a,'f0')
        for x in unit_sum(224,56,'uQ'): put(a,x)
        a("s_add_u32 s3, s25, s97"); a("s_lshl_b32 s43, s38, 5"); a("s_add_u32 s3, s3, s43"); a("s_mov_b64 exec, 0xffff")
        a("buffer_store_dwordx4 v[56:59], v51, s[32:35], s3 offen",'o'); a("s_mov_b64 exec, -1")
        a(f"s_add_u32 s23, s23, {8*FS}"); a("s_lshl_b32 s3, s67, 3"); a("s_add_u32 s27, s24, s3")
        probe(a,'f1')
        a.wait(v='stB'); put(a,setflag(4))
        probe(a,'f2')
        pb_l=[("buffer_load_dword v53, v50, s[4:7], s23 offen sc1",'pB')]
        put(a,pb_l[0])
        put(a,check("B",pb_l,["v_cmp_eq_u32 vcc, 0, v53","s_or_b64 vcc, vcc, vcc"],'pB'))
        probe(a,'s9')
        for x in ul(S1,"s27",'uB'): put(a,x)
        for x in unit_sum(S1,64,'uB'): put(a,x)
        a("s_add_u32 s3, s25, s67"); a("buffer_store_dwordx4 v[64:67], v51, s[32:35], s3 offen",'o')
    if dbg:
        a("s_waitcnt vmcnt(0)"); a("s_and_b32 s5, s5, 0xffff")
        dump_stamps(a,dbg,0,4)
```
